```python
import torch

def _softmax(x, axis=-1):
    return torch.softmax(x, dim=axis)
def _gelu(x):
    return torch.nn.functional.gelu(x, approximate="tanh")
def _silu(x):
    return torch.nn.functional.silu(x)
def _sigmoid(x):
    return torch.sigmoid(x)
def _layernorm(x, axis=-1, eps=1e-5):
    m = x.mean(dim=axis, keepdim=True)
    v = x.var(dim=axis, keepdim=True, unbiased=False)
    return (x - m) / torch.sqrt(v + eps)
def _scatter_add(tgt, idx, src, axis=0):
    return tgt.clone().index_add_(axis, idx, src)
def _segment_sum(src, seg, n):
    out = torch.zeros((n,) + src.shape[1:], dtype=src.dtype)
    return out.index_add_(0, seg, src)
def _pad(x, pw):
    flat = tuple(v for pair in reversed(pw) for v in pair)
    return torch.nn.functional.pad(x, flat)

kernel_name = 'interleave_layers__linear_attn_block__dense_activation_squared_relu__prompt'

def setup_inputs():

    _w = (lambda a: (lambda t: t.to(torch.bfloat16) if t.is_floating_point() else t)(torch.as_tensor(a)))
    def _A_setup():
        B, S, D = 1, 2048, 640
        return {
            "x": _w((lambda *s: torch.randn(*s, dtype=torch.bfloat16) * 0.05)(B, S, D)),
            "wqkv": _w((lambda *s: torch.randn(*s, dtype=torch.bfloat16) * 0.1)(D, 3 * D)),
            "wo": _w((lambda *s: torch.randn(*s, dtype=torch.bfloat16) * 0.05)(D, D)),
        }
    _A_in = _A_setup()

    def _B_setup():
        B, S, D, F = 1, 2048, 640, 1728
        return {
            "x": _w((lambda *s: torch.randn(*s, dtype=torch.bfloat16) * 0.05)(B, S, D)),
            "w1": _w((lambda *s: torch.randn(*s, dtype=torch.bfloat16) * 0.05)(D, F)),
            "b1": _w((lambda *s: torch.randn(*s, dtype=torch.bfloat16) * 0.2)(F)),
            "w2": _w((lambda *s: torch.randn(*s, dtype=torch.bfloat16) * 0.05)(F, D)),
            "b2": _w((lambda *s: torch.randn(*s, dtype=torch.bfloat16) * 0.8)(D)),
        }
    _B_in = _B_setup()

    return {
        "A_x": _A_in["x"],
        "A_wqkv": _A_in["wqkv"],
        "A_wo": _A_in["wo"],
        "B_x": _B_in["x"],
        "B_w1": _B_in["w1"],
        "B_b1": _B_in["b1"],
        "B_w2": _B_in["w2"],
        "B_b2": _B_in["b2"],
    }

def reference(A_x, A_wqkv, A_wo, B_x, B_w1, B_b1, B_w2, B_b2):
    def _A_ref(x, wqkv, wo):
        B, S, D = x.shape
        H = 32; Dh = D // H
        qkv = (lambda x, *d: x.permute(*d))((x @ wqkv).reshape(B, S, 3, H, Dh), 2, 0, 3, 1, 4)
        q, k, v = qkv[0], qkv[1], qkv[2]
        phi = lambda t: torch.where(t > 0, t + 1, torch.exp(t)) + 1e-6
        pq, pk = phi(q), phi(k)
        kv = torch.einsum("bhsd,bhse->bhde", pk, v)
        z = torch.einsum("bhsd->bhd", pk)
        num = torch.einsum("bhqd,bhde->bhqe", pq, kv)
        den = torch.einsum("bhqd,bhd->bhq", pq, z)[..., None] + 1e-6
        o = num / den
        return (lambda x, *d: x.permute(*d))(o, 0, 2, 1, 3).reshape(B, S, D) @ wo

    def _B_ref(x, w1, b1, w2, b2):
        h = torch.einsum("bsd,df->bsf", x, w1) + b1
        zero = torch.zeros_like(h)
        r = torch.where(h > zero, h, zero)
        h = r * r
        out = torch.einsum("bsf,fd->bsd", h, w2) + b2
        return out

    x = A_x
    x = x + _A_ref(_layernorm(x, axis=-1), A_wqkv, A_wo)
    x = x + _B_ref(_layernorm(x, axis=-1), B_w1, B_b1, B_w2, B_b2)
    x = x + _A_ref(_layernorm(x, axis=-1), A_wqkv, A_wo)
    x = x + _B_ref(_layernorm(x, axis=-1), B_w1, B_b1, B_w2, B_b2)
    return x
```

```python
NAME = "interleave_layers__linear_attn_block__dense_activation_squared_relu__prompt"
class Asm:
    def __init__(self):
        self.lines = []
        self.nlab = 0
    def __call__(self, s=""):
        for l in s.strip("\n").split("\n"):
            self.lines.append("    " + l.strip())
    def label(self, name):
        self.lines.append(name + ":")
    def newlabel(self, base="L"):
        self.nlab += 1
        return f"{base}_{self.nlab}"
    def raw(self, s): self.lines.append(s)
    def text(self):
        import re
        for l in self.lines:
            c = l.split(";")[0]
            m = re.search(r"offset:(-?(?:0x)?[0-9a-fA-F]+)", c)
            if m:
                o = int(m.group(1), 0)
                op = c.split()[0]
                if op.startswith("buffer_"): assert 0 <= o < 4096, l
                elif op.startswith("global_"): assert -4096 <= o < 4096, l
                elif op.startswith("ds_"): assert 0 <= o < 65536, l
            m = re.search(r"vmcnt\((\d+)\)", c)
            if m: assert int(m.group(1)) < 64, l
            m = re.search(r"lgkmcnt\((\d+)\)", c)
            if m: assert int(m.group(1)) < 16, l
        return "\n".join(self.lines) + "\n"

def kernel_header(label):
    return f""".globl {label}
.p2align 8
.type {label},@function
{label}:
"""
def kernel_desc(label, vgpr, sgpr, accum):
    return f""".amdhsa_kernel {label}
  .amdhsa_next_free_vgpr {vgpr}
  .amdhsa_next_free_sgpr {sgpr}
  .amdhsa_accum_offset {accum}
  .amdhsa_group_segment_fixed_size 0
  .amdhsa_kernarg_size 88
  .amdhsa_user_sgpr_count 2
  .amdhsa_user_sgpr_kernarg_segment_ptr 1
  .amdhsa_system_sgpr_workgroup_id_x 1
  .amdhsa_float_denorm_mode_32 3
.end_amdhsa_kernel
"""
def single_file(body, grid, block, lds, vgpr=256, sgpr=102, accum=256, label=NAME+"_kernel"):
    return (f"; @launch grid=({grid},1,1) block=({block},1,1) lds={lds}\n"
            '.amdgcn_target "amdgcn-amd-amdhsa--gfx950"\n.text\n' + kernel_header(label) + body +
            '.section .rodata,"a"\n.p2align 6\n' + kernel_desc(label, vgpr, sgpr, accum))
def multi_file(kernels, launches):
    s = "".join(f"; @launch kernel={l} grid=({g},1,1) block=({b},1,1) lds={lds}\n" for l, g, b, lds in launches)
    s += '.amdgcn_target "amdgcn-amd-amdhsa--gfx950"\n.text\n'
    for label, body, v, sg, a in kernels:
        s += kernel_header(label) + body
    s += '.section .rodata,"a"\n'
    for label, body, v, sg, a in kernels:
        s += ".p2align 6\n" + kernel_desc(label, v, sg, a)
    return s
```

```python
from prog import *
from layout import *

def magic(d): return -(-(1 << 32) // d)
def sdiv(p, q, r, x, d, tmp):
    p(f"s_mul_hi_u32 {q}, {x}, {magic(d)}\ns_mul_i32 {tmp}, {q}, {d}\ns_sub_u32 {r}, {x}, {tmp}")

def srd(p, base, ptr, nbytes):
    p(f"s_mov_b32 s{base}, s{ptr}\ns_mov_b32 s{base+1}, s{ptr+1}\ns_mov_b32 s{base+2}, {nbytes}\ns_mov_b32 s{base+3}, 0x20000")

NWG_X, NWG_Q, NWG_1, NWG_O, NWG_2, NWG_Z = 128, 80, 80, 40, 112, 48
PREP_GRID = NWG_X + NWG_Q + NWG_1 + NWG_O + NWG_2 + NWG_Z
PREP_LDS = 32768

def stage_rows(p, srdn, vsrc, sbase, sA, sB, sLds):
    toks = []
    p(f"s_mov_b32 s40, {sbase}\ns_mov_b32 s42, {sLds}")
    for n in range(8):
        if n & 1: p(f"s_add_u32 s41, s40, {sA}")
        else: p(f"s_mov_b32 s41, s40")
        p(f"s_mov_b32 m0, s42")
        toks.append(p.vm(f"buffer_load_dwordx4 {vsrc}, s[{srdn}:{srdn+3}], s41 offen lds"))
        p(f"s_add_u32 s42, s42, 1024")
        if n & 1: p(f"s_add_u32 s40, s40, {sB}")
    return toks

def gen_prep(pol="sc1"):
    p = Prog()
    p(f"""
    s_cmp_ge_u32 s2, {PREP_GRID}
    s_cbranch_scc1 P_end
    s_load_dwordx4 s[44:47], s[0:1], 0       ; x, wqkv
    s_load_dwordx2 s[48:49], s[0:1], 16      ; wo
    s_load_dwordx2 s[50:51], s[0:1], 32      ; w1
    s_load_dwordx2 s[52:53], s[0:1], 48      ; w2
    s_load_dwordx2 s[54:55], s[0:1], 80      ; ws
    v_lshrrev_b32 v1, 6, v0
    v_and_b32 v2, 63, v0                     ; lane
    v_readfirstlane_b32 s16, v1              ; wave
    v_and_b32 v3, 15, v2                     ; c
    v_lshrrev_b32 v4, 4, v2                  ; g
    v_lshlrev_b32 v5, 4, v2                  ; lane*16
    v_lshlrev_b32 v6, 3, v2                  ; lane*8
    v_lshlrev_b32 v7, 2, v2                  ; lane*4
    s_lshl_b32 s17, s16, 13
    s_waitcnt lgkmcnt(0)
    """)
    srd(p, 4, 54, WS_BYTES)
    p(f"""
    s_cmp_lt_u32 s2, {NWG_X}
    s_cbranch_scc1 P_x
    s_cmp_ge_u32 s2, {PREP_GRID-NWG_Z}
    s_cbranch_scc1 P_zero
    ; common for weight tasks: tr address pieces
    v_lshrrev_b32 v8, 2, v3                  ; r = c>>2
    v_and_b32 v9, 3, v3                      ; c' = c&3
    v_lshl_add_u32 v10, v4, 3, v8            ; 8g + r
    v_lshlrev_b32 v10, 8, v10
    v_add_u32 v10, s17, v10                  ; wavebase + (8g+r)*256
    v_lshl_add_u32 v11, v9, 4, v10
    v_lshl_add_u32 v12, v9, 3, v10
    s_sub_u32 s18, s2, {NWG_X}
    s_lshl_b32 s18, s18, 2
    s_add_u32 s18, s18, s16
    s_cmp_ge_u32 s18, {4*(NWG_Q+NWG_1)}
    s_cbranch_scc1 P_o2
    """)
    for t in range(4):
        p(f"v_cmp_eq_u32 vcc, {t}, v8\nv_mov_b32 v13, 0x3f803f80\nv_cndmask_b32 v{16+4*t}, 0, v13, vcc")
        for k in range(1, 4): p(f"v_mov_b32 v{16+4*t+k}, v{16+4*t}")
    p(f"s_cmp_ge_u32 s18, {4*NWG_Q}\ns_cbranch_scc1 P_w1")

    sdiv(p, "s19", "s20", "s18", 20, "s21")
    srd(p, 8, 46, 640*1920*2)
    p(f"""
    v_min_u32 v13, 14, v3
    v_mul_u32_u24 v14, 52, v13
    v_lshrrev_b32 v14, 8, v14                ; seg = c/5
    v_mul_u32_u24 v15, 1200, v14             ; seg*(1280-80)
    v_lshl_add_u32 v15, v13, 4, v15          ; + c*16
    v_mul_u32_u24 v14, 3840, v4
    v_add_u32 v15, v15, v14                  ; + (lane>>4)*rowstride
    s_mul_i32 s22, s20, {32*3840}
    s_mul_i32 s23, s19, 80
    s_add_u32 s22, s22, s23
    """)
    tk = stage_rows(p, 8, "v15", "s22", 4*3840, 8*3840, "s17")
    p(f"""
    v_lshlrev_b32 v13, 11, v4
    v_add_u32 v13, s17, v13                  ; wavebase + 8g*256
    v_lshl_add_u32 v13, v8, 1, v13           ; + 2*(c>>2)
    v_mad_u32_u24 v14, v9, 40, v13
    v_and_b32 v15, 1, v3
    v_mad_u32_u24 v15, v15, 40, v13
    s_mul_i32 s22, s19, {WQ_SL}
    s_mul_i32 s23, s20, 5120
    s_add_u32 s23, s23, s22
    s_add_u32 s24, s23, 4096
    s_mul_i32 s25, s20, 2560
    s_add_u32 s25, s25, s22
    s_add_u32 s25, s25, 102400
    s_mul_i32 s26, s18, 512
    s_add_u32 s26, s26, {CSQ_OFF}
    """)
    p.wait(*tk)
    tiles = [("tr", 80), ("tr", 120), ("tr", 160), ("tr", 200), ("u16", "v14", 112), ("tr", 0), ("tr", 40), ("u16", "v15", 32)]
    for t, d in enumerate(tiles):
        f = 40 + 4*t
        if d[0] == "tr":
            p.ds(f"ds_read_b64_tr_b16 v[{f}:{f+1}], v12 offset:{d[1]}")
            p.ds(f"ds_read_b64_tr_b16 v[{f+2}:{f+3}], v12 offset:{d[1]+1024}")
        else:
            b = 80 if t == 4 else 88
            for j in range(8): p.ds(f"ds_read_u16 v{b+j}, {d[1]} offset:{d[2]+256*j}")
    for t, d in enumerate(tiles):
        f = 40 + 4*t
        if d[0] == "u16":
            b = 80 if t == 4 else 88
            for k in range(4): p(f"v_lshl_or_b32 v{f+k}, v{b+2*k+1}, 16, v{b+2*k}")
        acc = 32 + 4*(t >> 2)
        p(f"v_mfma_f32_16x16x32_bf16 v[{acc}:{acc+3}], v[{16+4*(t&3)}:{19+4*(t&3)}], v[{f}:{f+3}], " + ("0" if t & 3 == 0 else f"v[{acc}:{acc+3}]"))
        if t < 4: p.vm(f"buffer_store_dwordx4 v[{f}:{f+3}], v5, s[4:7], s23 offen offset:{t*1024} {pol}")
        elif t == 4: p.vm(f"buffer_store_dwordx4 v[{f}:{f+3}], v5, s[4:7], s24 offen {pol}")
        elif t < 7: p.vm(f"buffer_store_dwordx4 v[{f}:{f+3}], v5, s[4:7], s25 offen offset:{(t-5)*1024} {pol}")
        else:
            p(f"""
            v_and_b32 v13, 1, v3
            v_lshl_add_u32 v13, v8, 1, v13
            v_lshl_add_u32 v13, v4, 3, v13
            v_lshlrev_b32 v13, 4, v13
            s_mov_b32 exec_lo, 0x33333333
            s_mov_b32 exec_hi, 0x33333333
            """)
            p.vm(f"buffer_store_dwordx4 v[{f}:{f+3}], v13, s[4:7], s25 offen offset:2048 {pol}")
            p("s_mov_b64 exec, -1")
    p.vm(f"buffer_store_dword v32, v7, s[4:7], s26 offen {pol}")
    p.vm(f"buffer_store_dword v36, v7, s[4:7], s26 offen offset:256 {pol}")
    p("s_endpgm")
    p.forget()

    p.label("P_w1")
    p(f"s_sub_u32 s18, s18, {4*NWG_Q}")
    sdiv(p, "s19", "s20", "s18", 20, "s21")
    srd(p, 8, 50, 640*1728*2)
    p(f"""
    s_mul_i32 s22, s19, 192
    s_lshr_b32 s23, s19, 1
    s_min_u32 s23, s23, 5
    s_add_u32 s23, s23, 48
    s_lshl_b32 s23, s23, 6
    s_sub_u32 s23, s23, 192
    v_mov_b32 v13, s22
    v_mov_b32 v14, s23
    v_cmp_gt_u32 vcc, 12, v3
    v_cndmask_b32 v13, v14, v13, vcc
    v_lshl_add_u32 v15, v3, 4, v13
    v_mul_u32_u24 v14, 3456, v4
    v_add_u32 v15, v15, v14
    s_mul_i32 s22, s20, {32*3456}
    """)
    tk = stage_rows(p, 8, "v15", "s22", 4*3456, 8*3456, "s17")
    p(f"""
    s_and_b32 s22, s19, 1
    s_lshl_b32 s22, s22, 3
    v_add_u32 v13, s22, v11
    s_mul_i32 s22, s19, {W1_SL}
    s_add_u32 s22, s22, {W1_OFF}
    s_lshl_b32 s23, s20, 12
    s_add_u32 s23, s23, s22
    s_mul_i32 s25, s20, 3072
    s_add_u32 s25, s25, s22
    s_add_u32 s25, s25, 81920
    s_mul_i32 s26, s18, 512
    s_add_u32 s26, s26, {CS1_OFF}
    s_cmp_lt_u32 s19, 12
    s_cselect_b32 s27, -1, 0
    """)
    p.wait(*tk)
    for t in range(7):
        f = 40 + 4*t
        va, off = ("v11", (t >> 1)*64 + (t & 1)*8) if t < 6 else ("v13", 192)
        p.ds(f"ds_read_b64_tr_b16 v[{f}:{f+1}], {va} offset:{off}")
        p.ds(f"ds_read_b64_tr_b16 v[{f+2}:{f+3}], {va} offset:{off+1024}")
    for t in range(7):
        f = 40 + 4*t
        if t == 6:
            for k in range(4): p(f"v_and_b32 v{f+k}, s27, v{f+k}")
        acc = 32 + 4*(t >> 2)
        p(f"v_mfma_f32_16x16x32_bf16 v[{acc}:{acc+3}], v[{16+4*(t&3)}:{19+4*(t&3)}], v[{f}:{f+3}], " + ("0" if t & 3 == 0 else f"v[{acc}:{acc+3}]"))
        if t < 4: p.vm(f"buffer_store_dwordx4 v[{f}:{f+3}], v5, s[4:7], s23 offen offset:{t*1024} {pol}")
        else: p.vm(f"buffer_store_dwordx4 v[{f}:{f+3}], v5, s[4:7], s25 offen offset:{(t-4)*1024} {pol}")
    p.vm(f"buffer_store_dword v32, v7, s[4:7], s26 offen {pol}")
    p.vm(f"buffer_store_dword v36, v7, s[4:7], s26 offen offset:256 {pol}")
    p("s_endpgm")
    p.forget()

    p.label("P_o2")
    p(f"""
    s_sub_u32 s18, s18, {4*(NWG_Q+NWG_1)}
    s_cmp_ge_u32 s18, {4*NWG_O}
    s_cbranch_scc1 P_w2
    """)
    sdiv(p, "s19", "s20", "s18", 20, "s21")
    sdiv(p, "s21", "s22", "s20", 5, "s23")
    srd(p, 8, 48, 640*640*2)
    p(f"""
    s_mul_i32 s23, s21, {160*1280}
    s_mul_i32 s24, s22, {40*1280}
    s_cmp_eq_u32 s22, 4
    s_cselect_b32 s24, {16*1280}, s24
    s_mov_b32 s28, {20*1280}
    s_mov_b32 s29, {4*1280}
    s_mov_b32 s30, 1280
    s_cselect_b32 s28, {80*1280}, s28         ; A
    s_cselect_b32 s29, s30, s29               ; B
    s_cselect_b32 s30, 25600, s30             ; lane row stride
    s_add_u32 s27, s23, s24
    s_mul_i32 s31, s18, 5120
    s_add_u32 s31, s31, {WO_OFF}              ; dest
    s_branch P_o2_common
    """)
    p.label("P_w2")
    p(f"s_sub_u32 s18, s18, {4*NWG_O}")
    sdiv(p, "s19", "s20", "s18", 56, "s21")
    sdiv(p, "s21", "s22", "s20", 14, "s23")
    srd(p, 8, 52, 1728*640*2)
    p(f"""
    s_mul_i32 s23, s21, 12
    s_add_u32 s23, s23, s22
    s_add_u32 s24, s21, 48
    s_cmp_eq_u32 s22, 12
    s_cselect_b32 s23, s24, s23
    s_lshr_b32 s24, s21, 1
    s_add_u32 s24, s24, 52
    s_cmp_eq_u32 s22, 13
    s_cselect_b32 s23, s24, s23
    s_mul_i32 s27, s23, {32*1280}
    s_mov_b32 s28, {4*1280}
    s_mov_b32 s29, {8*1280}
    s_mov_b32 s30, 1280
    s_mul_i32 s31, s18, 5120
    s_add_u32 s31, s31, {W2_OFF}
    """)
    p.label("P_o2_common")
    p(f"""
    s_lshr_b32 s23, s19, 1
    s_mul_i32 s23, s23, 5
    s_and_b32 s24, s19, 1
    s_lshl_b32 s25, s24, 1
    s_add_u32 s23, s23, s25
    s_lshl_b32 s23, s23, 6
    s_add_u32 s27, s27, s23
    v_min_u32 v13, 11, v3
    v_lshlrev_b32 v13, 4, v13
    v_mul_lo_u32 v14, v4, s30
    v_add_u32 v15, v13, v14
    """)
    tk = stage_rows(p, 8, "v15", "s27", "s28", "s29", "s17")
    p(f"""
    s_lshl_b32 s25, s24, 6
    v_add_u32 v13, s25, v11
    s_cmp_eq_u32 s24, 0
    s_cselect_b32 s25, 128, 8
    v_add_u32 v14, s25, v11
    s_add_u32 s32, s31, 4096
    """)
    p.wait(*tk)
    for t in range(5):
        f = 40 + 4*t
        va, off = ("v13", (t >> 1)*64 + (t & 1)*8) if t < 4 else ("v14", 0)
        p.ds(f"ds_read_b64_tr_b16 v[{f}:{f+1}], {va} offset:{off}")
        p.ds(f"ds_read_b64_tr_b16 v[{f+2}:{f+3}], {va} offset:{off+1024}")
    for t in range(5):
        f = 40 + 4*t
        if t < 4: p.vm(f"buffer_store_dwordx4 v[{f}:{f+3}], v5, s[4:7], s31 offen offset:{t*1024} {pol}")
        else: p.vm(f"buffer_store_dwordx4 v[{f}:{f+3}], v5, s[4:7], s32 offen {pol}")
    p("s_endpgm")
    p.forget()

    p.label("P_x")
    srd(p, 8, 44, 2048*640*2)
    p(f"""
    s_and_b32 s18, s2, 7
    s_lshl_b32 s18, s18, 4
    s_lshr_b32 s19, s2, 3
    s_add_u32 s18, s18, s19                   ; rt
    s_mul_i32 s19, s18, 20480
    s_mul_i32 s20, s16, 320
    s_add_u32 s20, s20, s19
    v_mul_u32_u24 v8, 1280, v3
    v_lshl_add_u32 v8, v4, 4, v8
    s_mul_i32 s21, s16, 5120
    s_add_u32 s21, s21, s19
    s_add_u32 s21, s21, {X_OFF}
    s_add_u32 s22, s21, 4096
    s_lshl_b32 s23, s18, 10
    s_lshl_b32 s24, s16, 8
    s_add_u32 s23, s23, s24
    s_add_u32 s23, s23, {ST_OFF}
    v_mov_b32 v10, 0
    v_mov_b32 v11, 0
    v_mov_b32 v12, 0x3f803f80
    """)
    for b in range(5):
        p.vm(f"buffer_load_dwordx4 v[{16+4*b}:{19+4*b}], v8, s[8:11], s20 offen offset:{b*64}")
    for b in range(5):
        f = 16 + 4*b
        if b == 2:
            p.vm(f"buffer_store_dwordx2 v[{f}:{f+1}], v6, s[4:7], s21 offen offset:2048 {pol}")
            p.vm(f"buffer_store_dwordx2 v[{f+2}:{f+3}], v6, s[4:7], s21 offen offset:2560 {pol}")
        elif b < 4: p.vm(f"buffer_store_dwordx4 v[{f}:{f+3}], v5, s[4:7], s21 offen offset:{b*1024} {pol}")
        else: p.vm(f"buffer_store_dwordx4 v[{f}:{f+3}], v5, s[4:7], s22 offen {pol}")
        for k in range(4):
            p(f"v_dot2_f32_bf16 v10, v{f+k}, v12, v10\nv_dot2_f32_bf16 v11, v{f+k}, v{f+k}, v11")
    p(f"""
    v_permlane32_swap_b32 v10, v11
    v_add_f32 v10, v10, v11
    v_mov_b32 v11, v10
    v_permlane16_swap_b32 v10, v11
    v_add_f32 v10, v10, v11
    v_lshrrev_b32 v13, 1, v4
    v_lshlrev_b32 v13, 6, v13
    v_lshl_add_u32 v13, v3, 2, v13
    v_mov_b32 v14, 0
    """)
    p.vm(f"buffer_store_dword v10, v13, s[4:7], s23 offen {pol}")
    p.vm(f"buffer_store_dword v14, v13, s[4:7], s23 offen offset:128 {pol}")
    p("s_endpgm")
    p.forget()

    p.label("P_zero")
    p(f"""
    s_sub_u32 s18, s2, {PREP_GRID-NWG_Z}
    s_lshl_b32 s18, s18, 12
    s_add_u32 s18, s18, {KV_OFF}
    v_lshlrev_b32 v8, 4, v0
    v_mov_b32 v12, 0
    v_mov_b32 v13, 0
    v_mov_b32 v14, 0
    v_mov_b32 v15, 0
    """)
    p.vm(f"buffer_store_dwordx4 v[12:15], v8, s[4:7], s18 offen sc1")
    p.label("P_end")
    p("s_endpgm")
    return p.text()

if __name__ == "__main__":
    from asmgen import multi_file
    body = gen_prep()
    open("prep_only.s", "w").write(multi_file([("prep_kernel", body, 96, 64, 96)], [("prep_kernel", PREP_GRID, 256, PREP_LDS)]))
```

```python
WQ_OFF  = 0x0;      WQ_SL = 153600
W1_OFF  = 0x258000; W1_SL = 143360
WO_OFF  = 0x488000; WO_SL = 102400
W2_OFF  = 0x550000; W2_SL = 286720
CSQ_OFF = 0x780000
CS1_OFF = 0x7A8000
KV_OFF  = 0x7D0000; KV_LAYER = 16*5120
FL_OFF  = 0x7F8000
FX_OFF  = FL_OFF
FO_OFF  = FL_OFF + 0x2000
FH_OFF  = FL_OFF + 0x3000
FXCC_OFF = FL_OFF + 0x4000
X_OFF   = 0x800000
O_OFF   = 0xA80000
ST_OFF  = 0xD00000
H_OFF   = 0xD20000
STAMP_OFF = 0x1400000
WS_BYTES = 268435456

def wq_p1_off(ks): return (71680 + ks*5120) if ks < 16 else (51200 + (ks-16)*5120)
PSTAMP_OFF = 0x1500000
```

```python
import re

class Tok:
    __slots__ = ("kind", "name")
    def __init__(self, kind, name=""): self.kind = kind; self.name = name

class I:
    __slots__ = ("text", "tok", "needs", "kind", "invisible")
    def __init__(self, text, tok=None, needs=(), kind="i", invisible=False):
        self.text = text; self.tok = tok; self.needs = list(needs); self.kind = kind; self.invisible = invisible

def regs_of(op):
    op = op.strip()
    neg = op.lstrip("-")
    if neg.startswith("abs(") and neg.endswith(")"): neg = neg[4:-1]
    if neg.startswith("|") and neg.endswith("|"): neg = neg[1:-1]
    m = re.fullmatch(r"([vas])(\d+)", neg)
    if m: return {(m.group(1), int(m.group(2)))}
    m = re.fullmatch(r"([vas])\[(\d+):(\d+)\]", neg)
    if m: return {(m.group(1), k) for k in range(int(m.group(2)), int(m.group(3)) + 1)}
    if neg == "vcc": return {("s", "vcc")}
    if neg == "exec": return {("s", "exec")}
    if neg == "m0": return {("s", "m0")}
    return set()

TRANS = ("v_exp_f32", "v_log_f32", "v_rcp_f32", "v_rsq_f32", "v_sqrt_f32", "v_sin_f32", "v_cos_f32")
class Dec:
    def __init__(self, text):
        t = text.split(";")[0].strip()
        self.op = t.split()[0] if t else ""
        rest = t[len(self.op):].strip()
        ops = [o.strip() for o in re.split(r",(?![^\[]*\])", rest)] if rest else []
        mods = ""
        if ops:
            parts = ops[-1].split(None, 1)
            if parts:
                ops[-1] = parts[0]; mods = parts[1] if len(parts) > 1 else ""
        self.ops = ops; self.mods = mods
        op = self.op
        self.W = set(); self.R = set(); self.A = set(); self.C = set(); self.data = set()
        self.valu = op.startswith("v_") and not op.startswith("v_mfma")
        self.mfma = op.startswith("v_mfma")
        self.vmem = op.startswith(("buffer_", "global_"))
        self.ds = op.startswith("ds_")
        self.salu = op.startswith("s_")
        self.trans = op.replace("_e32", "").replace("_e64", "") in TRANS
        self.dpp = "_dpp" in op or "row_" in mods or "quad_perm" in mods
        self.perml = op.startswith("v_permlane")
        self.rdlane = op.startswith(("v_readlane", "v_readfirstlane"))
        self.ldsdma = self.vmem and re.search(r"\blds\b", mods) is not None
        self.widestore = False
        R = lambda l: set().union(*[regs_of(o) for o in l]) if l else set()
        if self.mfma:
            self.W = regs_of(ops[0]); self.A = R(ops[1:3]); self.C = regs_of(ops[3]); self.R = self.A | self.C
            assert "16x16x32" in op, op
        elif self.valu:
            if self.perml:
                self.W = R(ops[0:2]); self.R = set(self.W)
            elif op.startswith(("v_add_co", "v_sub_co", "v_addc_co", "v_subb_co")):
                self.W = R(ops[0:2]); self.R = R(ops[2:])
            else:
                self.W = regs_of(ops[0]); self.R = R(ops[1:])
                if op.startswith(("v_fmac", "v_dot2c", "v_writelane")) or self.dpp: self.R |= self.W
        elif self.vmem:
            if op.startswith(("buffer_wbl2", "buffer_inv")): pass
            elif self.ldsdma:
                self.R = R(ops) | {("s", "m0")}
            elif "load" in op:
                self.W = regs_of(ops[0]); self.R = R(ops[1:])
            else:
                self.R = R(ops)
                if op.startswith("buffer_"): self.data = regs_of(ops[0])
                else: self.data = regs_of(ops[1])
                self.widestore = ("x3" in op or "x4" in op) and "store" in op
        elif self.ds:
            if op.startswith(("ds_read", "ds_bpermute", "ds_swizzle")):
                self.W = regs_of(ops[0]); self.R = R(ops[1:])
            else:
                self.R = R(ops)
        elif self.salu:
            if op.startswith(("s_cmp", "s_waitcnt", "s_nop", "s_barrier", "s_branch", "s_cbranch", "s_endpgm", "s_sleep", "s_setprio", "s_bitcmp")):
                self.R = R(ops)
            else:
                self.W = regs_of(ops[0]) if ops else set(); self.R = R(ops[1:])
                if "saveexec" in op: self.W |= {("s", "exec")}

def need_states(p, c):
    n = 0
    vW = {r for r in p.W if r[0] in "va"}
    sW = {r for r in p.W if r[0] == "s"}
    if p.valu:
        if c.mfma and (vW & c.R): n = max(n, 2)
        if c.perml and (vW & c.R): n = max(n, 2)
        if c.dpp and (vW & c.R): n = max(n, 2)
        if c.rdlane and (vW & c.R): n = max(n, 1)
        if p.trans and c.valu and not c.trans and (vW & c.R): n = max(n, 1)
        if p.trans and c.trans and (vW & c.R): n = max(n, 1)
        if sW:
            if c.vmem and (sW & c.R): n = max(n, 5)
            if c.valu and (sW & c.R): n = max(n, 4 if c.op.startswith(("v_readlane", "v_writelane")) else 2)
            if c.salu and (sW & c.R): n = max(n, 1)
    if p.op.startswith("v_dot"):
        if c.op == p.op:
            if vW & (regs_of(c.ops[1]) | regs_of(c.ops[2])): n = max(n, 3)
        elif vW & (c.R | c.W): n = max(n, 3)
    if p.mfma:
        if c.mfma:
            if p.W & c.A: n = max(n, 8)
            if p.W & c.C and c.C != p.W: n = max(n, 6)
            if p.W & c.W and c.C != p.W: n = max(n, 8)
        elif c.valu or c.vmem or c.ds:
            if p.W & (c.R | c.W): n = max(n, 8)
        if c.valu and (p.C & c.W): n = max(n, 3)
    if p.widestore and (p.data & c.W):
        n = max(n, 2)
    if p.salu and ("s", "m0") in p.W and (c.ldsdma or (c.op.startswith("v_writelane") and ("s","m0") in c.R)): n = max(n, 1)
    return n

class Prog:
    def __init__(self):
        self.items = []
        self.nlab = 0
    def __call__(self, s, needs=()):
        first = True
        for l in s.strip("\n").split("\n"):
            l = l.strip()
            if not l or l.startswith(";"): continue
            assert not l.startswith(("buffer_", "global_", "ds_")), "use vm()/ds(): " + l
            self.items.append(I(l, needs=needs if first else ()))
            first = False
    def mk(self, s, needs=()): return I(s.strip(), needs=needs)
    def mkvm(self, s, needs=(), invisible=False):
        return I(s.strip(), tok=Tok("vm"), needs=needs, invisible=invisible)
    def mkds(self, s, needs=()): return I(s.strip(), tok=Tok("ds"), needs=needs)
    def add(self, it):
        if isinstance(it, (list, tuple)):
            for x in it: self.add(x)
        else: self.items.append(it)
        return it
    def vm(self, s, needs=(), invisible=False): return self.add(self.mkvm(s, needs, invisible)).tok
    def ds(self, s, needs=()): return self.add(self.mkds(s, needs)).tok
    def wait(self, *toks): self.items.append(I("", needs=toks, kind="waitonly"))
    def waitall(self, vm=True, lgkm=True): self.items.append(I("vm" * vm + "lgkm" * lgkm, kind="waitall"))
    def forget(self): self.items.append(I("", kind="forget"))
    def label(self, name): self.items.append(I(name, kind="label"))
    def newlabel(self, base="L"):
        self.nlab += 1; return f"{base}_{self.nlab}"
    def raw(self, s): self.items.append(I(s, kind="raw"))
    def comment(self, s): self.items.append(I("; " + s, kind="raw"))
    def lines(self):
        out = []; vmq = []; dsq = []; pending = {}
        def emit_wait(needs):
            v = l = None
            for t in needs:
                if t is None: continue
                q = vmq if t.kind == "vm" else dsq
                if t in q:
                    n = len(q) - 1 - q.index(t)
                    if t.kind == "vm": v = n if v is None else min(v, n)
                    else: l = n if l is None else min(l, n)
            s = []
            if v is not None:
                del vmq[:len(vmq) - v]
                if v <= 63: s.append(f"vmcnt({v})")
            if l is not None:
                del dsq[:len(dsq) - l]
                if l <= 15: s.append(f"lgkmcnt({l})")
            if s: out.append(("i", "s_waitcnt " + " ".join(s)))
        for it in self.items:
            if it.kind == "waitall":
                s = []
                if "vm" in it.text: s.append("vmcnt(0)"); vmq.clear()
                if "lgkm" in it.text: s.append("lgkmcnt(0)"); dsq.clear()
                out.append(("i", "s_waitcnt " + " ".join(s))); continue
            if it.kind == "forget": vmq.clear(); dsq.clear(); continue
            needs = list(it.needs)
            if it.kind == "i":
                d = Dec(it.text)
                for r in d.R | d.W:
                    if r in pending: needs.append(pending[r])
            if needs: emit_wait(needs)
            if it.kind == "waitonly": continue
            if it.kind == "i":
                out.append(("i", it.text))
                if it.tok is not None:
                    for r in d.W:
                        assert not it.invisible
                        pending[r] = it.tok
                if it.tok is not None and not it.invisible:
                    (vmq if it.tok.kind == "vm" else dsq).append(it.tok)
            else: out.append((it.kind, it.text))
        return out
    def text(self):
        src = self.lines()
        out = []; hist = []
        self.nop_states = 0
        def pad(n):
            self.nop_states += n
            while n > 0:
                k = min(n, 16); out.append(f"    s_nop {k-1}"); n -= k
                for h in hist: h[1] += k
        def flush():
            m = 0
            for d, s in hist:
                w = 8 if d.mfma else 3 if d.op.startswith("v_dot") else 5 if (d.valu and any(r[0] == "s" for r in d.W)) else 2 if (d.valu or d.widestore) else 1 if (d.salu and ("s","m0") in d.W) else 0
                m = max(m, w - s)
            pad(m); hist.clear()
        for kind, t in src:
            if kind == "label":
                flush(); out.append(t + ":"); continue
            if kind == "raw":
                out.append(t); continue
            d = Dec(t)
            check_inst(t, d)
            need = 0
            for p, s in hist: need = max(need, need_states(p, d) - s)
            if d.op.startswith(("s_branch", "s_cbranch", "s_endpgm")):
                pad(need);
                if not d.op.startswith("s_endpgm"): flush()
                out.append("    " + t); continue
            pad(need)
            out.append("    " + t)
            k = int(d.ops[0]) + 1 if d.op == "s_nop" else 1
            for h in hist: h[1] += k
            hist.append([d, 0])
            while hist and hist[0][1] > 12: hist.pop(0)
        return "\n".join(out) + "\n"

def check_inst(t, d):
    m = re.search(r"offset:(-?(?:0x)?[0-9a-fA-F]+)", t)
    if m:
        o = int(m.group(1), 0)
        if d.op.startswith("buffer_"): assert 0 <= o < 4096, t
        elif d.op.startswith("global_"): assert -4096 <= o < 4096, t
        elif d.op.startswith("ds_"): assert 0 <= o < 65536, t
    for r in d.R | d.W:
        if r[0] in "va": assert r[1] < 256, t
        elif isinstance(r[1], int): assert r[1] < 102, t
    for o in d.ops:
        m = re.fullmatch(r"-?([va])\[(\d+):(\d+)\]", o)
        if m: assert int(m.group(2)) % 2 == 0, "odd tuple: " + t

def interleave(main, side, start=0, per=1, every=1):
    out = [list(x) if isinstance(x, (list, tuple)) else [x] for x in main]
    k = 0; pos = start
    while k < len(side):
        p = min(pos, len(out) - 1)
        for _ in range(per):
            if k < len(side):
                s = side[k]; out[p].extend(s if isinstance(s, (list, tuple)) else [s]); k += 1
        pos += every
    return out
```

```python
from prog import *
from layout import *
from gen_prep import srd

TAB = 153600
T_CSQ, T_CS1, T_B1, T_B2 = TAB, TAB+512, TAB+1024, TAB+1536
T_ST = TAB + 2048
LDS_BYTES = 163840
SCR = 92160
LOG2E = 0x3fb8aa3b
EPS6 = 0x358637bd
EPS5 = 0x3727c5ac
RCP640 = 0x3acccccd

vL16, vL8, vL4, vL1, vL2, vQX1, vQX2 = "v1", "v2", "v3", "v4", "v5", "v6", "v7"
vA = ["v8", "v9"]; vAh = ["v10", "v11"]
vSTr, vSTw, vXW, vXWh = "v12", "v13", "v14", "v15"
RES = 16
vTab4, vTabC, vP, vT0, vT1, vL4p = "v26", "v27", "v28", "v29", "v30", "v31"
sW, sG, sM, sRQ, sCB = "s16", "s17", "s18", "s19", "s20"
s4K = ["0", "s21", "s22", "s23", "s24"]
sWQ, sW1, sWO, sW2 = "s25", "s26", "s27", "s28"
sOW = ["s29", "s30"]; sOL = ["s31", "s32", "s33", "s34"]
sHW, sHS, sHL, sHL12, sHL13 = "s35", "s36", "s37", "s38", "s39"
sFXw, sFXp, sFOw, sFOp, sFHw, sFHp = "s40", "s41", "s42", "s43", "s44", "s45"
sKV, sKVw = "s46", "s47"
sODD = "s[48:49]"; sLO2 = "s[50:51]"
sT = ["s52", "s53", "s54", "s55", "s56", "s57"]
sDm, sDs = "s58", "s59"
sSpin = "s60"
sOUT = "s61"
STAMP0 = 64

def q(b, n=4, f="v"): return f"{f}[{b}:{b+n-1}]"
def mfma(d, a, b, c): return f"v_mfma_f32_16x16x32_bf16 {d}, {a}, {b}, {c}"
def ldsaddr(off, qx=False):
    w = off >> 16
    regs = [None, vQX1, vQX2] if qx else [vL16, vL1, vL2]
    return regs[w], off & 0xffff

class Main:
    def __init__(self, pol="", stamps=True, stop_after=None, opts=None):
        self.p = Prog(); self.pol = pol; self.stamps = stamps; self.nst = 0; self.stop_after = stop_after
        self.o = dict(lookA=4); self.o.update(opts or {})
        self.stamp_names = []
    def stamp(self, name):
        if not self.stamps: return
        p = self.p
        k = self.nst; self.nst += 1; self.stamp_names.append(name)
        p(f"s_memtime s[{STAMP0}:{STAMP0+1}]")
        p.waitall(vm=False)
        p(f"v_writelane_b32 v{250 + k//64}, s{STAMP0}, {k%64}")
    def _dma(self, pre, nbytes):
        p = self.p; items = []
        offs = list(range(0, nbytes - 1023, 1024))
        if nbytes % 1024: offs.append(nbytes - 1024)
        base = 0
        for k, off in enumerate(offs):
            it = []
            if k == 0: it += pre + [p.mk(f"s_mov_b32 m0, {sDm}")]
            elif off - base >= 4096:
                d = off - base; base = off
                it += [p.mk(f"s_add_u32 {sDs}, {sDs}, {d}"), p.mk(f"s_add_u32 {sDm}, {sDm}, {d}"), p.mk(f"s_mov_b32 m0, {sDm}")]
            it.append(p.mkvm(f"buffer_load_dwordx4 {vL16}, s[4:7], {sDs} offen offset:{off-base} lds"))
            items.append(it)
        return items
    def dma(self, src_sgpr, src_off, lds_off, wave_bytes):
        p = self.p
        assert lds_off + 4*wave_bytes <= TAB
        return self._dma([p.mk(f"s_mul_i32 {sDm}, {sW}, {wave_bytes}"), p.mk(f"s_add_u32 {sDs}, {sDm}, {src_sgpr}"),
                          p.mk(f"s_add_u32 {sDs}, {sDs}, {src_off}"), p.mk(f"s_add_u32 {sDm}, {sDm}, {lds_off}")], wave_bytes)
    def dma_priv(self, src_sgpr, src_off, lds_off, wave_bytes):
        p = self.p
        assert lds_off + 4*wave_bytes <= TAB
        return self._dma([p.mk(f"s_mul_i32 {sDm}, {sW}, {wave_bytes}"), p.mk(f"s_add_u32 {sDm}, {sDm}, {lds_off}"),
                          p.mk(f"s_add_u32 {sDs}, {src_sgpr}, {src_off}")], wave_bytes)
    def regload(self, src_sgpr, src_off, regs, tmp):
        p = self.p; items = []
        for k, r in enumerate(regs):
            it = []
            if k % 4 == 0: it.append(p.mk(f"s_add_u32 {tmp}, {src_sgpr}, {src_off + k*1024}"))
            it.append(p.mkvm(f"buffer_load_dwordx4 {r}, {vL16}, s[4:7], {tmp} offen offset:{(k%4)*1024}"))
            items.append(it)
        return items
    @staticmethod
    def toks(items):
        out = []
        for it in items:
            for x in (it if isinstance(it, (list, tuple)) else [it]):
                if x.tok is not None: out.append(x.tok)
        return out
    def poll(self, soff, mask, val, name):
        p = self.p; L = p.newlabel("L_poll");
        p(f"v_and_b32 {vT0}, {mask*4+3}, {vL4}\ns_mov_b32 {sSpin}, 0\ns_mov_b32 {sT[0]}, {val}")
        p.label(L)
        p.vm(f"buffer_load_dword {vP}, {vT0}, s[4:7], {soff} offen sc1")
        p(f"s_add_u32 {sSpin}, {sSpin}, 1\ns_cmp_gt_u32 {sSpin}, 0x40000\ns_cbranch_scc1 L_abort")
        p.waitall(lgkm=False)
        p(f"v_cmp_gt_u32 vcc, {sT[0]}, {vP}\ns_cbranch_vccnz {L}")
        self.stamp(name)
    def signal(self, soff, val, toks):
        p = self.p
        p(f"v_mov_b32 {vT0}, {val}")
        p.wait(*toks)
        p("s_mov_b64 exec, 1")
        p.vm(f"buffer_store_dword {vT0}, off, s[4:7], {soff} {self.pol}")
        p("s_mov_b64 exec, -1")
    def a_loads(self, ks):
        p = self.p; items = []
        for rt in range(2):
            b = (ks*2 + rt)*4
            so = s4K[ks >> 2]; io = (ks & 3)*1024
            if ks % 5 == 2:
                items.append(p.mkvm(f"buffer_load_dwordx2 a[{b}:{b+1}], {vAh[rt]}, s[4:7], {so} offen offset:{io} sc1"))
                items.append(p.mkvm(f"buffer_load_dwordx2 a[{b+2}:{b+3}], {vAh[rt]}, s[4:7], {so} offen offset:{io+512} sc1"))
            else:
                items.append(p.mkvm(f"buffer_load_dwordx4 a[{b}:{b+3}], {vA[rt]}, s[4:7], {so} offen offset:{io} sc1"))
        return items
    def stats_loads(self, base):
        return [self.p.mkvm(f"buffer_load_dword v{base+rt*4+u}, {vSTr}, s[4:7], 0 offen offset:{rt*1024+u*256} sc1") for rt in range(2) for u in range(4)]
    def stats_calc(self, base, rs, mrs):
        p = self.p; it = []
        for rt in range(2):
            b = base + rt*4
            for s in f"""v_add_f32 v{b}, v{b}, v{b+1}
            v_add_f32 v{b+2}, v{b+2}, v{b+3}
            v_add_f32 v{b}, v{b}, v{b+2}
            v_mov_b32 v{b+1}, v{b}
            v_permlane16_swap_b32 v{b}, v{b+1}
            v_add_f32 v{b}, v{b}, v{b+1}
            v_mov_b32 v{b+1}, v{b}
            v_permlane32_swap_b32 v{b}, v{b+1}
            v_mul_f32 v{b}, {RCP640}, v{b}
            v_mul_f32 v{b+1}, {RCP640}, v{b+1}
            v_fma_f32 v{b+1}, -v{b}, v{b}, v{b+1}
            v_max_f32 v{b+1}, 0, v{b+1}
            v_add_f32 v{b+1}, {EPS5}, v{b+1}
            v_rsq_f32 {rs[rt]}, v{b+1}
            v_mul_f32 {mrs[rt]}, -v{b}, {rs[rt]}""".split("\n"):
                s = s.strip()
                if s.startswith("v_mul_f32") and "-v" in s: s = s.replace("v_mul_f32", "v_mul_f32_e64")
                it.append(p.mk(s))
        return it
    def gemm_pass(self, nsteps, mf, dsr, extra=None, pre=None, first_ds_done=False):
        p = self.p; extra = extra or {}; pre = pre or {}
        if not first_ds_done:
            if 0 in pre: pre[0]()
            for s in dsr(0): p.ds(s)
        for st in range(nsteps):
            main = [[p.mk(m)] for m in mf(st)]
            side = []
            nx = dsr(st+1) if st+1 < nsteps else []
            if st+1 < nsteps and (st+1) in pre:
                p.add(main[0]); main = main[1:]
                pre[st+1]()
            n = len(main)
            main = interleave(main, [p.mkds(s) for s in nx], start=0, per=1, every=max(1, n // max(1, len(nx))))
            ex = extra.get(st, [])
            if ex:
                per = -(-len(ex) // n)
                every = max(1, n // len(ex)) if per == 1 else 1
                main = interleave(main, ex, start=1 if every > 1 else 0, per=per, every=every)
            p.add(main)

    def setup(self):
        p = self.p
        p(f"""
        s_cmp_ge_u32 s2, 256
        s_cbranch_scc1 L_exit
        s_load_dwordx2 s[52:53], s[0:1], 80
        s_load_dwordx2 s[54:55], s[0:1], 64
        s_load_dwordx2 s[56:57], s[0:1], 40
        s_load_dwordx2 s[62:63], s[0:1], 56
        v_lshrrev_b32 v32, 6, v0
        v_and_b32 v33, 63, v0
        v_readfirstlane_b32 {sW}, v32
        v_and_b32 v34, 15, v33                   ; c
        v_lshrrev_b32 v35, 4, v33                ; g
        v_lshlrev_b32 {vL16}, 4, v33
        v_lshlrev_b32 {vL8}, 3, v33
        v_lshlrev_b32 {vL4}, 2, v33
        v_add_u32 {vL1}, 0x10000, {vL16}
        v_add_u32 {vL2}, 0x20000, {vL16}
        v_add_u32 {vL4p}, 1024, {vL4}
        v_lshrrev_b32 v36, 2, v34
        v_and_b32 v37, 1, v34
        v_lshl_add_u32 v36, v36, 1, v37
        v_lshl_add_u32 v36, v35, 3, v36
        v_lshlrev_b32 v36, 4, v36
        v_add_u32 {vQX1}, 0x10000, v36
        v_add_u32 {vQX2}, 0x20000, v36
        s_and_b32 {sG}, s2, 7
        s_lshl_b32 {sG}, {sG}, 1
        s_lshr_b32 {sM}, s2, 7
        s_add_u32 {sG}, {sG}, {sM}
        s_lshr_b32 {sM}, s2, 3
        s_and_b32 {sM}, {sM}, 15
        s_lshl_b32 {sRQ}, {sG}, 1
        s_lshr_b32 s3, {sM}, 3
        s_add_u32 {sRQ}, {sRQ}, s3
        s_and_b32 {sCB}, {sM}, 7
        s_mov_b32 s21, 4096
        s_mov_b32 s22, 8192
        s_mov_b32 s23, 12288
        s_mov_b32 s24, 16384
        s_mul_i32 {sWQ}, {sM}, {WQ_SL}
        s_mul_i32 {sW1}, {sM}, {W1_SL}
        s_add_u32 {sW1}, {sW1}, {W1_OFF}
        s_mul_i32 {sWO}, {sCB}, {WO_SL}
        s_mul_i32 s3, {sW}, 25600
        s_add_u32 {sWO}, {sWO}, s3
        s_add_u32 {sWO}, {sWO}, {WO_OFF}
        s_mul_i32 {sW2}, {sCB}, {W2_SL}
        s_mul_i32 s3, {sW}, 71680
        s_add_u32 {sW2}, {sW2}, s3
        s_add_u32 {sW2}, {sW2}, {W2_OFF}
        s_waitcnt lgkmcnt(0)
        """)
        srd(p, 4, 52, WS_BYTES); srd(p, 8, 54, 2048*640*2); srd(p, 12, 56, 1728*2)
        p(f"""
        s_mov_b32 s68, s62
        s_mov_b32 s69, s63
        s_mov_b32 s70, 1280
        s_mov_b32 s71, 0x20000
        """)
    def setup2(self):
        p = self.p
        p(f"""
        s_lshl_b32 s52, {sG}, 3
        s_lshl_b32 s3, {sW}, 1
        s_add_u32 s52, s52, s3
        s_lshl_b32 s53, {sRQ}, 2
        s_add_u32 s53, s53, {sW}
        s_lshr_b32 s54, s52, 2
        s_and_b32 s55, {sW}, 1
        s_mul_i32 s3, s52, 20480
        s_add_u32 s3, s3, {X_OFF}
        v_add_u32 {vA[0]}, s3, {vL16}
        v_add_u32 {vAh[0]}, s3, {vL8}
        s_add_u32 s3, s3, 20480
        v_add_u32 {vA[1]}, s3, {vL16}
        v_add_u32 {vAh[1]}, s3, {vL8}
        v_lshrrev_b32 v36, 1, v35
        v_lshlrev_b32 v36, 6, v36
        v_lshl_add_u32 v36, v34, 2, v36          ; (g>>1)*64 + c*4
        v_and_b32 v37, 1, v35
        v_lshl_add_u32 v37, v37, 7, v36
        s_lshl_b32 s3, s52, 10
        s_add_u32 s3, s3, {ST_OFF}
        v_add_u32 {vSTr}, s3, v37
        s_lshl_b32 s3, s53, 10
        s_lshl_b32 s56, {sCB}, 7
        s_add_u32 s3, s3, s56
        s_add_u32 s3, s3, {ST_OFF}
        v_add_u32 {vSTw}, s3, v36
        s_lshr_b32 s56, {sCB}, 1
        s_mul_i32 s56, s56, 5                    ; 5*c2
        s_and_b32 s57, {sCB}, 1
        s_mul_i32 s3, s57, 3
        s_add_u32 s3, s3, s56                    ; b0
        s_lshl_b32 {sOUT}, s3, 6
        s_mul_i32 s62, s53, 20
        s_add_u32 s3, s3, s62
        s_lshl_b32 s3, s3, 10
        s_add_u32 s3, s3, {X_OFF}
        v_add_u32 {vXW}, s3, {vL16}
        s_add_u32 s3, s56, 2
        s_add_u32 s3, s3, s62
        s_lshl_b32 s3, s3, 10
        s_lshl_b32 s63, s57, 9
        s_add_u32 s3, s3, s63
        s_add_u32 s3, s3, {X_OFF}
        v_add_u32 {vXWh}, s3, {vL8}
        s_mul_i32 s3, s53, 20480
        s_add_u32 {sOUT}, {sOUT}, s3
        v_lshlrev_b32 {vTab4}, 4, v35
        v_add_u32 {vTab4}, {TAB - 0x20000}, {vTab4}
        v_add_u32 {vTab4}, 0x20000, {vTab4}
        v_lshlrev_b32 {vTabC}, 2, v34
        v_add_u32 {vTabC}, {TAB}, {vTabC}
        s_lshl_b32 s3, s52, 4
        s_add_u32 s3, s3, {sM}
        s_mul_i32 s3, s3, 1280
        s_add_u32 {sOW[0]}, s3, {O_OFF}
        s_add_u32 {sOW[1]}, {sOW[0]}, 20480
        """)
        for i in range(4):
            p(f"""
            s_add_u32 s3, {sW}, {1+i}
            s_and_b32 s3, s3, 3
            s_lshl_b32 s62, {sRQ}, 2
            s_add_u32 s3, s3, s62
            s_lshl_b32 s3, s3, 2
            s_add_u32 s3, s3, {sW}
            s_mul_i32 s3, s3, 5120
            s_add_u32 {sOL[i]}, s3, {O_OFF}
            """)
        p(f"""
        s_mul_i32 s3, s54, 221184
        s_lshl_b32 s62, s55, 11
        s_add_u32 s3, s3, s62
        s_add_u32 s3, s3, {H_OFF}
        s_mul_i32 s62, {sM}, 12288
        s_add_u32 {sHW}, s3, s62
        s_lshr_b32 s62, {sM}, 1
        s_add_u32 s62, s62, 48
        s_lshl_b32 s62, s62, 12
        s_add_u32 s3, s3, s62
        s_and_b32 s62, {sM}, 1
        s_lshl_b32 s62, s62, 9
        s_add_u32 s3, s3, s62
        s_cmp_lt_u32 {sM}, 12
        s_cselect_b32 {sHS}, s3, {WS_BYTES}
        s_mul_i32 s3, {sRQ}, 221184
        s_add_u32 s3, s3, {H_OFF}
        s_mul_i32 s62, {sW}, 49152
        s_add_u32 {sHL}, s3, s62
        s_add_u32 s62, {sW}, 48
        s_lshl_b32 s62, s62, 12
        s_add_u32 {sHL12}, s3, s62
        s_lshr_b32 s62, {sW}, 1
        s_add_u32 s62, s62, 52
        s_lshl_b32 s62, s62, 12
        s_add_u32 {sHL13}, s3, s62
        s_lshr_b32 s3, s53, 1
        s_lshl_b32 s3, s3, 7
        s_and_b32 s62, s53, 1
        s_lshl_b32 s62, s62, 3
        s_add_u32 s62, s62, {sCB}
        s_lshl_b32 s62, s62, 2
        s_add_u32 s3, s3, s62
        s_add_u32 {sFXw}, s3, {FX_OFF}
        s_lshr_b32 s3, s52, 1
        s_lshl_b32 s3, s3, 7
        s_add_u32 {sFXp}, s3, {FX_OFF}
        s_lshl_b32 s3, s54, 7
        s_lshl_b32 s62, {sM}, 1
        s_add_u32 s62, s62, s55
        s_lshl_b32 s62, s62, 2
        s_add_u32 s3, s3, s62
        s_add_u32 {sFOw}, s3, {FO_OFF}
        s_add_u32 {sFHw}, s3, {FH_OFF}
        s_lshl_b32 s3, {sRQ}, 7
        s_add_u32 {sFHp}, s3, {FH_OFF}
        s_lshl_b32 s62, {sW}, 5
        s_add_u32 s3, s3, s62
        s_add_u32 {sFOp}, s3, {FO_OFF}
        s_mul_i32 {sKV}, {sM}, 5120
        s_add_u32 {sKV}, {sKV}, {KV_OFF}
        s_mul_i32 s3, {sW}, 1280
        s_add_u32 {sKVw}, {sKV}, s3
        s_mov_b32 s48, 0xaaaaaaaa
        s_mov_b32 s49, 0xaaaaaaaa
        s_mov_b32 s50, 0x33333333
        s_mov_b32 s51, 0x33333333
        """)
    def tables_load(self):
        p = self.p
        p(f"""
        v_and_b32 v36, 127, v0
        v_lshlrev_b32 v200, 2, v36                ; col*4
        s_mul_i32 s3, {sM}, 10240
        s_cmp_ge_u32 {sW}, 2
        s_cselect_b32 s62, {CS1_OFF-CSQ_OFF}, 0
        s_add_u32 s3, s3, s62
        s_add_u32 s72, s3, {CSQ_OFF}
        s_add_u32 s73, s72, 4096
        s_add_u32 s74, s72, 8192
        v_lshrrev_b32 v37, 4, v36                 ; t
        v_lshrrev_b32 v38, 2, v34
        v_lshlrev_b32 v38, 3, v38
        v_and_b32 v39, 3, v34
        v_add_u32 v38, v38, v39                   ; 8*(i>>2) + (i&3)
        v_lshrrev_b32 v39, 1, v37                 ; t>>1
        v_and_b32 v40, 1, v37
        v_lshlrev_b32 v39, 5, v39
        v_lshl_add_u32 v39, v40, 2, v39           ; 32*(t>>1) + 4*(t&1)
        s_mul_i32 s3, {sM}, 96
        s_lshr_b32 s62, {sM}, 1
        s_min_u32 s62, s62, 5
        s_add_u32 s62, s62, 48
        s_lshl_b32 s62, s62, 5
        s_and_b32 s63, {sM}, 1
        s_lshl_b32 s63, s63, 2
        s_add_u32 s62, s62, s63
        v_add_u32 v41, s3, v39
        v_mov_b32 v42, s62
        v_cmp_le_u32 vcc, 6, v37
        v_cndmask_b32 v41, v41, v42, vcc
        v_add_lshl_u32 v201, v41, v38, 1
        s_mul_i32 s3, s57, 3
        s_add_u32 s3, s3, s56
        s_lshl_b32 s3, s3, 5
        s_add_u32 s62, s56, 2
        s_lshl_b32 s62, s62, 5
        s_lshl_b32 s63, s57, 2
        s_add_u32 s62, s62, s63
        v_add_u32 v41, s3, v39
        v_mov_b32 v42, s62
        v_cmp_le_u32 vcc, 4, v37
        v_cndmask_b32 v41, v41, v42, vcc
        v_add_lshl_u32 v202, v41, v38, 1
        s_lshr_b32 s3, {sW}, 1
        s_lshl_b32 s3, s3, 9
        s_add_u32 s3, s3, {TAB}
        v_add_u32 v203, s3, v200
        s_cmp_ge_u32 {sW}, 2
        s_cselect_b32 s3, {T_B1}, 0
        s_cselect_b32 s62, 0, {T_B2}
        s_add_u32 s3, s3, s62
        v_add_u32 v204, s3, v200
        s_cselect_b64 s[62:63], -1, 0
        s_cmp_ge_u32 {sW}, 2
        s_cselect_b64 s[62:63], -1, 0
        """)
        items = []
        for ks in range(20):
            items.append(p.mkvm(f"buffer_load_dword v{208+ks}, v200, s[4:7], {['s72','s73','s74'][ks>>3]} offen offset:{(ks&7)*512}"))
        items.append(p.mkvm(f"buffer_load_ushort v228, v201, s[12:15], 0 offen"))
        items.append(p.mkvm(f"buffer_load_ushort v229, v202, s[68:71], 0 offen"))
        fin = [p.mk(f"v_add_f32 v{208+k}, v{208+k}, v{218+k}") for k in range(10)]
        fin += [p.mk(f"v_add_f32 v{208+k}, v{208+k}, v{213+k}") for k in range(5)]
        fin += [p.mk(s) for s in ("v_add_f32 v208, v208, v209", "v_add_f32 v210, v210, v211", "v_add_f32 v208, v208, v212", "v_add_f32 v208, v208, v210",
                                   "v_cndmask_b32 v228, v229, v228, s[62:63]", "v_lshlrev_b32 v228, 16, v228")]
        fin += [p.mkds("ds_write_b32 v203, v208"), p.mkds("ds_write_b32 v204, v228")]
        return items, fin

    def phase_A(self, layer, late_dma):
        p = self.p; o = self.o
        ACC = lambda t, rt: q(32 + (t*2 + rt)*4)
        BB = lambda st, t: q(72 + (st & 1)*20 + t*4)
        AF = lambda ks, rt: q((ks*2 + rt)*4, 4, "a")
        look = o["lookA"]
        extra = {k: [] for k in range(20)}
        stage_toks = {s: self.toks(v) for s, v in late_dma.items()}
        if layer == 0:
            tl, tfin = self.tables_load()
        p.add(late_dma.get(0, []))
        for ks in range(look): p.add(self.a_loads(ks))
        p.add(late_dma.get(1, []))
        if layer == 0:
            p.vm(f"buffer_load_dwordx4 {q(RES)}, {vXW}, s[4:7], 0 offen sc1")
            p.vm(f"buffer_load_dwordx4 {q(RES+4)}, {vXW}, s[4:7], 0 offen offset:1024 sc1")
            p.vm(f"buffer_load_dwordx2 {q(RES+8,2)}, {vXWh}, s[4:7], 0 offen sc1")
        for ks in range(look, 20): extra[ks-look] += self.a_loads(ks)
        extra[0] += self.stats_loads(176)
        for s in range(2, 6):
            d = late_dma.get(s, [])
            k0 = 4*(s-2) + 1
            n = 3 if s < 5 else 7
            per = -(-len(d)//n)
            for i in range(n): extra[min(19, k0+i)] += d[i*per:(i+1)*per]
        if layer == 0:
            for i in range(2): extra[2+i] += tl[i*11:(i+1)*11]
            extra[10] += tfin[:12]; extra[11] += tfin[12:]
        rs = ["v152", "v153"]; mrs = ["v154", "v155"]
        sc = self.stats_calc(176, rs, mrs)
        extra[6] += sc[:8]; extra[7] += sc[8:15]; extra[8] += sc[15:23]; extra[9] += sc[23:]
        st = [p.mk(f"s_lshl_b32 s3, {sW}, 8"), p.mk(f"v_add_u32 v184, s3, {vTabC}"), p.mk(f"v_add_u32 v185, s3, {vTab4}")]
        for rt in range(2):
            st.append(p.mkds(f"ds_write_b32 v184, {rs[rt]} offset:{2048 + rt*64}"))
            st.append(p.mkds(f"ds_write_b32 v184, {mrs[rt]} offset:{2048 + 128 + rt*64}"))
        extra[12] += st
        wtok = self.toks(st)
        rd = []
        for rt in range(2):
            rd.append(p.mkds(f"ds_read_b128 {q(136+rt*4)}, v185 offset:{2048 + rt*64}"))
            rd.append(p.mkds(f"ds_read_b128 {q(144+rt*4)}, v185 offset:{2048 + 128 + rt*64}"))
        extra[14] += rd
        cs = [p.mkds(f"ds_read_b32 v{156+t}, {vTabC} offset:{t*64}") for t in range(5)]
        cs += [p.mkds(f"ds_read_b128 {q(164+4*t)}, {vTab4} offset:{(5+t)*64}") for t in range(3)]
        extra[17] += cs[:4]; extra[18] += cs[4:]
        def bar(s):
            def f():
                p.wait(*stage_toks.get(s, []))
                if s == 4 and layer == 0: p.wait(*self.toks(tfin))
                p("s_barrier")
            return f
        pre = {4*s: bar(s) for s in range(5)}
        def mf(ks): return [mfma(ACC(t, rt), AF(ks, rt), BB(ks, t), "0" if ks == 0 else ACC(t, rt)) for t in range(5) for rt in range(2)]
        def dsr(ks):
            r = []
            for t in range(5):
                b, im = ldsaddr(ks*5120 + t*1024); r.append(f"ds_read_b128 {BB(ks, t)}, {b} offset:{im}")
            return r
        self.gemm_pass(20, mf, dsr, extra, pre)
        self.stamp(f"A{layer}.p1")
        RS = lambda rt, r: f"v{136+rt*4+r}"; MRS = lambda rt, r: f"v{144+rt*4+r}"
        PK = lambda t: 72 + 4*t
        p(f"s_mov_b32 {sT[1]}, {LOG2E}\ns_mov_b32 {sT[2]}, {EPS6}")
        for t in (0, 1, 4, 2, 3):
            for rt in range(2):
                a = 32 + (t*2 + rt)*4
                for r in range(4):
                    p(f"v_mul_f32 v{176+r}, {MRS(rt,r)}, v{156+t}")
                for r in range(4):
                    p(f"v_fma_f32 v{a+r}, v{a+r}, {RS(rt,r)}, v{176+r}")
                if t in (0, 1, 4):
                    for r in range(4): p(f"v_mul_f32 v{176+r}, {sT[1]}, v{a+r}")
                    for r in range(4): p(f"v_exp_f32_e64 v{176+r}, v{176+r} clamp")
                    for r in range(4): p(f"v_max_f32 v{180+r}, 0, v{a+r}")
                    for r in range(4): p(f"v_add_f32 v{176+r}, {sT[2]}, v{176+r}")
                    if t == 4:
                        for r in range(4): p(f"v_add_f32 v{176+r}, v{176+r}, v{180+r}")
                        for r in range(4): p(f"v_cndmask_b32 v{a+r}, v{a+r}, v{176+r}, {sLO2}")
                    else:
                        for r in range(4): p(f"v_add_f32 v{a+r}, v{176+r}, v{180+r}")
                p(f"v_cvt_pk_bf16_f32 v{PK(t)+rt*2}, v{a}, v{a+1}\nv_cvt_pk_bf16_f32 v{PK(t)+rt*2+1}, v{a+2}, v{a+3}")
            if t == 4:
                p(f"v_mov_b32 v176, 0x3f803f80")
                for k in range(4): p(f"v_cndmask_b32 v{92+k}, v{PK(4)+k}, v176, {sLO2}")
        K0, K1, V0, V1, X, XP = (q(PK(0)), q(PK(1)), q(PK(2)), q(PK(3)), q(PK(4)), q(92))
        p(mfma(q(40), K0, XP, "0")); p(mfma(q(44), K1, XP, "0")); p(mfma(q(48), X, XP, "0"))
        p(mfma(q(32), K0, V0, "0")); p(mfma(q(52), X, V0, "0")); p(mfma(q(36), K1, V1, "0")); p(mfma(q(56), X, V1, "0"))
        p(f"""
        v_mov_b32 v179, 0x3e800000
        v_mov_b32 v183, 0x3e800000
        v_mov_b32 v187, 0x3e800000
        v_mov_b32 v191, 0x3e800000
        v_mov_b32 v195, 0x3e800000
        s_mul_i32 s3, {sW}, 5120
        v_add_u32 v196, s3, {vL16}
        s_mul_i32 s3, {sW}, 1280
        v_add_u32 v197, s3, {vL4}
        v_cndmask_b32 v189, v40, v44, {sODD}
        v_cndmask_b32 v190, v41, v45, {sODD}
        v_cndmask_b32 v192, v42, v46, {sODD}
        v_cndmask_b32 v193, v43, v47, {sODD}
        v_cndmask_b32 v194, v48, v49, {sODD}
        v_mov_b32 v176, v32
        v_mov_b32 v177, v33
        v_mov_b32 v178, v34
        v_mov_b32 v180, v35
        v_mov_b32 v181, v52
        v_mov_b32 v182, v36
        v_mov_b32 v184, v37
        v_mov_b32 v185, v38
        v_mov_b32 v186, v39
        v_mov_b32 v188, v57
        """)
        wt = [p.ds(f"ds_write_b128 v196, {q(176+4*k)} offset:{k*1024}") for k in (4, 0, 1, 2, 3)]
        p.wait(*wt); p.wait(*stage_toks.get(5, []))
        p("s_barrier")
        BB2 = lambda st, t: q(72 + (st & 1)*12 + t*4)
        def dsr2(ks):
            r = []
            for t in range(3):
                b, im = ldsaddr(102400 + ks*2560 + t*1024, qx=(t == 2)); r.append(f"ds_read_b128 {BB2(ks, t)}, {b} offset:{im}")
            return r
        for i in range(5):
            for s in range(4): p.ds(f"ds_read_b32 v{200+i*4+s}, v197 offset:{s*5120 + i*256}")
            if i == 2:
                pass
        at = []
        for i in range(5):
            b = 200 + i*4
            p(f"v_add_f32 v{b}, v{b}, v{b+1}\nv_add_f32 v{b+2}, v{b+2}, v{b+3}\nv_add_f32 v{b}, v{b}, v{b+2}")
            at.append(p.vm(f"buffer_atomic_add_f32 v{b}, {vL4}, s[4:7], {sKVw} offen offset:{i*256}"))
        self.stamp(f"A{layer}.atom")
        ACC2 = lambda t, rt: q(112 + (t*2 + rt)*4)
        extra = {k: [] for k in range(20)}
        wo = self.regload(sWO, 0, [q(160+4*k, 4, "a") for k in range(24)] + [q(252)], sT[3])
        w1a = self.dma(sW1, 20480, 20480, 15360)
        w1b = self.dma(sW1, 0, 0, 5120)
        bg = wo + w1a + w1b
        n = o.get("A2_bgsteps", 20); per = -(-len(bg)//n)
        for i in range(n): extra[i] += bg[i*per:(i+1)*per]
        self.w1p1_toks = self.toks(w1a + w1b)
        pre = {6: lambda: p("s_barrier")}
        assert (len(wo) + len(w1a)) // per >= 6
        def mf2(ks): return [mfma(ACC2(t, rt), BB2(ks, t), AF(ks, rt), "0" if ks == 0 else ACC2(t, rt)) for t in range(3) for rt in range(2)]
        self.gemm_pass(20, mf2, dsr2, extra, pre)
        p("s_barrier")
        self.stamp(f"A{layer}.p2")
        for rt in range(2):
            D = 72 + rt*6
            for t in range(3):
                a = 112 + (t*2 + rt)*4; n = 4 if t < 2 else 2
                for r in range(n): p(f"v_mul_f32 v{176+r}, {mrs[rt]}, v{164+4*t+r}")
                for r in range(n): p(f"v_fma_f32 v{a+r}, v{a+r}, {rs[rt]}, v{176+r}")
                for r in range(n): p(f"v_mul_f32 v{176+r}, {sT[1]}, v{a+r}")
                for r in range(n): p(f"v_exp_f32_e64 v{176+r}, v{176+r} clamp")
                for r in range(n): p(f"v_max_f32 v{a+r}, 0, v{a+r}")
                for r in range(n): p(f"v_add_f32 v{176+r}, {sT[2]}, v{176+r}")
                for r in range(n): p(f"v_add_f32 v{a+r}, v{a+r}, v{176+r}")
                if t == 0: p(f"v_cvt_pk_bf16_f32 v{D}, v{a}, v{a+1}\nv_cvt_pk_bf16_f32 v{D+1}, v{a+2}, v{a+3}")
                elif t == 1: p(f"v_cvt_pk_bf16_f32 v{D+3}, v{a}, v{a+1}\nv_cvt_pk_bf16_f32 v{D+4}, v{a+2}, v{a+3}")
                else: p(f"v_cvt_pk_bf16_f32 v{D+2}, v{a}, v{a+1}")
            p(f"v_mov_b32 v{D+5}, 0")
        L = p.newlabel("L_kv")
        p(f"s_add_u32 {sT[3]}, {sKV}, 4096\ns_mov_b32 {sSpin}, 0\ns_mov_b32 {sT[0]}, 0x41800000")
        for k in (91, 95, 99, 103): p(f"v_mov_b32 v{k}, 0")
        self.stamp(f"A{layer}.phi")
        p.label(L)
        for k in range(5):
            so, im = (sKV, k*1024) if k < 4 else (sT[3], 0)
            p.vm(f"buffer_load_dwordx4 {q(176+4*k)}, {vL16}, s[4:7], {so} offen offset:{im} sc1")
        p(f"s_add_u32 {sSpin}, {sSpin}, 1\ns_cmp_gt_u32 {sSpin}, 0x40000\ns_cbranch_scc1 L_abort")
        p.waitall(lgkm=False)
        p(f"""
        v_min_f32 v196, v179, v183
        v_min3_f32 v196, v196, v187, v191
        v_min_f32 v196, v196, v195
        v_cmp_gt_f32 vcc, {sT[0]}, v196
        s_cbranch_vccnz {L}
        """)
        self.stamp(f"A{layer}.kv")
        a_ = [176, 177, 178, 180, 181]; b_ = [182, 184, 185, 186, 188]; y_ = [189, 190, 192, 193, 194]
        p(f"""
        v_cvt_pk_bf16_f32 v88, v{a_[0]}, v{a_[1]}
        v_cvt_pk_bf16_f32 v89, v{a_[2]}, v{a_[3]}
        v_cvt_pk_bf16_f32 v90, v{a_[4]}, 0
        v_cvt_pk_bf16_f32 v92, 0, v{b_[4]}
        v_cvt_pk_bf16_f32 v93, v{b_[0]}, v{b_[1]}
        v_cvt_pk_bf16_f32 v94, v{b_[2]}, v{b_[3]}
        v_cvt_pk_bf16_f32 v104, v{y_[0]}, v{y_[1]}
        v_cvt_pk_bf16_f32 v105, v{y_[2]}, v{y_[3]}
        v_cvt_pk_bf16_f32 v106, v{y_[4]}, 0
        v_cvt_pk_bf16_f32 v107, 0, v{y_[4]}
        v_cndmask_b32 v96, v104, 0, {sODD}
        v_cndmask_b32 v97, v105, 0, {sODD}
        v_cndmask_b32 v98, v106, 0, {sODD}
        v_cndmask_b32 v100, 0, v107, {sODD}
        v_cndmask_b32 v101, 0, v104, {sODD}
        v_cndmask_b32 v102, 0, v105, {sODD}
        """)
        for rt in range(2):
            D = 72 + rt*6; b = 32 + rt*12
            p(mfma(q(b+8), q(96), q(D), "0"))
            p(mfma(q(b), q(88), q(D), "0"))
            p(mfma(q(b+8), q(100), q(D+2), q(b+8)))
            p(mfma(q(b+4), q(92), q(D+2), "0"))
        st = []
        for rt in range(2):
            b = 32 + rt*12; P = 176 + rt*6
            p(f"""
            v_add_f32 v{b+8}, {sT[2]}, v{b+8}
            v_add_f32 v{b+9}, {sT[2]}, v{b+9}
            v_rcp_f32 v{b+8}, v{b+8}
            v_rcp_f32 v{b+9}, v{b+9}
            """)
            for r in range(4): p(f"v_mul_f32 v{b+r}, v{b+r}, v{b+8}")
            for r in range(4): p(f"v_mul_f32 v{b+4+r}, v{b+4+r}, v{b+9}")
            p(f"""
            v_mul_f32 v{b+10}, v{b+10}, v{b+8}
            v_mul_f32 v{b+11}, v{b+11}, v{b+9}
            v_cvt_pk_bf16_f32 v{P}, v{b}, v{b+1}
            v_cvt_pk_bf16_f32 v{P+1}, v{b+2}, v{b+3}
            v_cvt_pk_bf16_f32 v{P+2}, v{b+4}, v{b+5}
            v_cvt_pk_bf16_f32 v{P+3}, v{b+6}, v{b+7}
            v_cvt_pk_bf16_f32 v{P+4}, v{b+10}, v{b+11}
            """)
            st.append(p.vm(f"buffer_store_dwordx4 {q(P)}, {vL16}, s[4:7], {sOW[rt]} offen {self.pol}"))
            st.append(p.vm(f"buffer_store_dword v{P+4}, {vL4p}, s[4:7], {sOW[rt]} offen {self.pol}"))
        p(f"s_add_u32 {sKV}, {sKV}, {KV_LAYER}\ns_add_u32 {sKVw}, {sKVw}, {KV_LAYER}")
        self.signal(sFOw, layer+1, st)
        self.stamp(f"A{layer}.sig")

    def scratch_addrs(self, base):
        p = self.p
        for i in range(3):
            p(f"s_add_u32 s3, {sW}, {1+i}\ns_and_b32 s3, s3, 3\ns_mul_i32 s3, s3, 15360\ns_add_u32 s3, s3, {SCR + i*5120}\nv_add_u32 v{base+i}, s3, {vL16}")
        p(f"s_mul_i32 s3, {sW}, 15360\ns_add_u32 s3, s3, {SCR}\nv_add_u32 v{base+3}, s3, {vL16}")
    def scr_writes(self, i, base):
        return [self.p.mkds(f"ds_write_b128 v{base+i}, {q(32 + (i*5+t)*4)} offset:{t*1024}") for t in range(5)]
    def reduce_epilogue(self, base, wtoks, bias, final, flagval, after_reads=None, name=""):
        p = self.p
        own = lambda t: 32 + (15 + t)*4
        if bias:
            for t in range(5): p.ds(f"ds_read_b128 {q(152+4*t)}, {vTab4} offset:{T_B2-TAB + t*64}")
        for t in range(5):
            a = own(t); r0 = RES + 2*t
            p(f"""
            v_lshlrev_b32 v176, 16, v{r0}
            v_and_b32 v177, 0xffff0000, v{r0}
            v_lshlrev_b32 v178, 16, v{r0+1}
            v_and_b32 v179, 0xffff0000, v{r0+1}
            """)
            if bias: p(f"v_pk_add_f32 v[176:177], v[176:177], v[{152+4*t}:{153+4*t}]\nv_pk_add_f32 v[178:179], v[178:179], v[{154+4*t}:{155+4*t}]")
            p(f"v_pk_add_f32 v[{a}:{a+1}], v[{a}:{a+1}], v[176:177]\nv_pk_add_f32 v[{a+2}:{a+3}], v[{a+2}:{a+3}], v[178:179]")
        p.wait(*wtoks)
        p("s_barrier")
        rt = []
        for t in range(5):
            for i in range(3): rt.append(p.ds(f"ds_read_b128 {q(32 + (i*5+t)*4)}, v{base+3} offset:{i*5120 + t*1024}"))
        p(f"v_mov_b32 v176, 0\nv_mov_b32 v177, 0\nv_mov_b32 v178, 0x3f803f80")
        st = []
        for t in range(5):
            a = own(t)
            for h in (0, 2):
                x0, x1, x2 = (32 + (i*5+t)*4 + h for i in range(3))
                p(f"v_pk_add_f32 v[{x0}:{x0+1}], v[{x0}:{x0+1}], v[{x1}:{x1+1}]\nv_pk_add_f32 v[{a+h}:{a+h+1}], v[{a+h}:{a+h+1}], v[{x2}:{x2+1}]\nv_pk_add_f32 v[{a+h}:{a+h+1}], v[{a+h}:{a+h+1}], v[{x0}:{x0+1}]")
            p(f"v_cvt_pk_bf16_f32 v{RES+2*t}, v{a}, v{a+1}\nv_cvt_pk_bf16_f32 v{RES+2*t+1}, v{a+2}, v{a+3}")
            if t in (1, 3, 4):
                if final:
                    if t == 1:
                        p(f"v_lshrrev_b32 v180, 6, {vL4}\nv_lshlrev_b32 v180, 4, v180\nv_and_b32 v181, 60, {vL4}\nv_mul_u32_u24 v181, 320, v181\nv_add_u32 v180, v180, v181")
                        p(f"s_and_b32 s3, {sCB}, 1\ns_mul_i32 s3, s3, {-64-128+8 & 0xffffffff}\ns_add_u32 s3, s3, 128\ns_add_u32 {sT[1]}, s3, {sOUT}")
                    if t < 4: p.vm(f"buffer_store_dwordx4 {q(RES+2*t-2)}, v180, s[8:11], {sOUT} offen offset:{(t>>1)*64}")
                    else: p.vm(f"buffer_store_dwordx2 {q(RES+8,2)}, v180, s[8:11], {sT[1]} offen")
                else:
                    if t < 4: st.append(p.vm(f"buffer_store_dwordx4 {q(RES+2*t-2)}, {vXW}, s[4:7], 0 offen offset:{(t>>1)*1024} {self.pol}"))
                    else: st.append(p.vm(f"buffer_store_dwordx2 {q(RES+8,2)}, {vXWh}, s[4:7], 0 offen {self.pol}"))
        if final: return
        for k in range(10):
            p(f"v_dot2_f32_bf16 v176, v{RES+k}, v178, v176\nv_dot2_f32_bf16 v177, v{RES+k}, v{RES+k}, v177")
        p(f"""
        v_permlane32_swap_b32 v176, v177
        v_add_f32 v176, v176, v177
        v_mov_b32 v177, v176
        v_permlane16_swap_b32 v176, v177
        v_add_f32 v176, v176, v177
        """)
        st.append(p.vm(f"buffer_store_dword v176, {vSTw}, s[4:7], 0 offen {self.pol}"))
        self.signal(sFXw, flagval, st)
        self.stamp(name + ".sig")
        p("s_barrier")

    def phase_B(self, layer):
        p = self.p
        self.scratch_addrs(240)
        self.poll(sFOp, 7, layer+1, f"B{layer}.poll")
        OF = lambda i, k: q((i*5 + k)*4, 4, "a")
        WF = lambda k, t: q(160 + (k*5+t)*4, 4, "a") if k*5+t < 24 else q(252)
        def loads(i):
            r = [p.mkvm(f"buffer_load_dwordx4 {OF(i,u)}, {vL16}, s[4:7], {sOL[i]} offen offset:{u*1280} sc1") for u in range(4)]
            r += [p.mkvm(f"buffer_load_dword a{(i*5+4)*4+u}, {vL4p}, s[4:7], {sOL[i]} offen offset:{u*1280} sc1") for u in range(4)]
            return r
        p.add(loads(0)); p.add(loads(1))
        wt = []
        for i in range(4):
            main = [[p.mk(mfma(q(32+(i*5+t)*4), WF(k, t), OF(i, k), "0" if k == 0 else q(32+(i*5+t)*4)))] for k in range(5) for t in range(5)]
            if i + 2 < 4: main = interleave(main, loads(i+2), start=0, per=1, every=2)
            if i > 0:
                w = self.scr_writes(i-1, 240); wt += self.toks(w)
                main = interleave(main, w, start=6, per=1, every=4)
            p.add(main)
        self.stamp(f"B{layer}.mm")
        self.reduce_epilogue(240, wt, False, False, 2*layer+1, name=f"B{layer}")

    def phase_C(self, layer):
        p = self.p; o = self.o
        look = o["lookA"]
        w1p2 = self.dma(sW1, 81920, SCR, 15360)
        if o.get("w1p2_early", 1): p.add(w1p2)
        self.poll(sFXp, 15, 2*layer+1, f"C{layer}.poll")
        ACC = lambda t, rt: q(32 + (t*2 + rt)*4)
        BB = lambda st, t: q(88 + (st & 1)*16 + t*4)
        AF = lambda ks, rt: q((ks*2 + rt)*4, 4, "a")
        extra = {k: [] for k in range(20)}
        for ks in range(look): p.add(self.a_loads(ks))
        for ks in range(look, 20): extra[ks-look] += self.a_loads(ks)
        extra[0] += self.stats_loads(176)
        if not o.get("w1p2_early", 1):
            for i in range(15): extra[5+i].append(w1p2[i])
        rs = ["v152", "v153"]; mrs = ["v154", "v155"]
        sc = self.stats_calc(176, rs, mrs)
        extra[6] += sc[:8]; extra[7] += sc[8:15]; extra[8] += sc[15:23]; extra[9] += sc[23:]
        for t in range(7):
            it = [p.mkds(f"ds_read_b128 {q(156)}, {vTab4} offset:{T_CS1-TAB + t*64}"), p.mkds(f"ds_read_b128 {q(160)}, {vTab4} offset:{T_B1-TAB + t*64}")]
            extra[10+t] += it
            f = []
            for rt in range(2):
                for r in range(4): f.append(p.mk(f"v_fma_f32 v{184+(t*2+rt)*4+r}, v{156+r}, {mrs[rt]}, v{160+r}"))
            extra[10+t] += f
        pre = {0: lambda: (p.wait(*self.w1p1_toks), p("s_barrier"))}
        def mf(ks): return [mfma(ACC(t, rt), BB(ks, t), AF(ks, rt), "0" if ks == 0 else ACC(t, rt)) for t in range(4) for rt in range(2)]
        def dsr(ks):
            r = []
            for t in range(4):
                b, im = ldsaddr(ks*4096 + t*1024); r.append(f"ds_read_b128 {BB(ks, t)}, {b} offset:{im}")
            return r
        self.gemm_pass(20, mf, dsr, extra, pre)
        self.stamp(f"C{layer}.p1")
        def epi(t, rt, dst):
            a = 32 + (t*2 + rt)*4; tt = 184 + (t*2+rt)*4
            it = [p.mk(f"v_fma_f32 v{a+r}, v{a+r}, {rs[rt]}, v{tt+r}") for r in range(4)]
            it += [p.mk(f"v_max_f32 v{a+r}, 0, v{a+r}") for r in range(4)]
            it += [p.mk(f"v_mul_f32 v{a+r}, v{a+r}, v{a+r}") for r in range(4)]
            it += [p.mk(f"v_cvt_pk_bf16_f32 v{dst}, v{a}, v{a+1}"), p.mk(f"v_cvt_pk_bf16_f32 v{dst+1}, v{a+2}, v{a+3}")]
            return it
        st = []
        e1 = [p.mk(f"s_add_u32 {sT[1]}, {sHW}, 4096"), p.mk(f"s_add_u32 {sT[2]}, {sHW}, 8192")]
        for b in range(2):
            for rt in range(2):
                d = 120 + (b*2 + rt)*4
                e1 += epi(2*b, rt, d) + epi(2*b+1, rt, d+2)
                s = p.mkvm(f"buffer_store_dwordx4 {q(d)}, {vL16}, s[4:7], {[sHW, sT[1]][b]} offen offset:{rt*1024} {self.pol}")
                e1.append(s); st.append(s.tok)
        extra = {k: [] for k in range(20)}
        per = 8
        for i in range(-(-len(e1)//per)): extra[1+i] += e1[i*per:(i+1)*per]
        w2r = self.regload(sW2, 7*5120, [q(160+4*k, 4, "a") for k in range(24)], sT[3])
        w2lo = self.dma_priv(sW2, 3*5120, 0, 20480)
        bg = w2lo + w2r
        n = o.get("C2_bgsteps", 16); per = -(-len(bg)//n)
        for i in range(n): extra[i] += bg[i*per:(i+1)*per]
        self.w2lo = [self.toks(w2lo[5*k:5*k+5]) for k in range(4)]
        BB2 = lambda s_, t: q(88 + (s_ & 1)*12 + t*4)
        def dsr2(ks):
            r = []
            for t in range(3):
                b, im = ldsaddr(SCR + ks*3072 + t*1024); r.append(f"ds_read_b128 {BB2(ks, t)}, {b} offset:{im}")
            return r
        def mf2(ks): return [mfma(ACC(4+t, rt), BB2(ks, t), AF(ks, rt), "0" if ks == 0 else ACC(4+t, rt)) for t in range(3) for rt in range(2)]
        pre = {0: lambda: (p.wait(*self.toks(w1p2)), p("s_barrier"))}
        self.gemm_pass(20, mf2, dsr2, extra, pre)
        self.stamp(f"C{layer}.p2")
        for rt in range(2):
            d = 136 + rt*8
            p.add(epi(4, rt, d) + epi(5, rt, d+2))
            st.append(p.vm(f"buffer_store_dwordx4 {q(d)}, {vL16}, s[4:7], {sT[2]} offen offset:{rt*1024} {self.pol}"))
            p.add(epi(6, rt, d+4))
            st.append(p.vm(f"buffer_store_dwordx2 {q(d+4,2)}, {vL8}, s[4:7], {sHS} offen offset:{rt*1024} {self.pol}"))
        self.signal(sFHw, layer+1, st)
        self.stamp(f"C{layer}.sig")
        p("s_barrier")

    def phase_D(self, layer):
        p = self.p; o = self.o
        final = layer == 1
        w2hi = self.dma_priv(sW2, 0, SCR, 15360)
        p.add(w2hi)
        self.scratch_addrs(240)
        for i in range(4):
            p(f"s_add_u32 s3, {sW}, {1+i}\ns_and_b32 s3, s3, 3\ns_lshl_b32 s3, s3, 10\nv_add_u32 v{244+i}, s3, {vL16}\nv_add_u32 v{176+i}, s3, {vL8}")
        p(f"s_mul_i32 s3, {sW}, 15360\ns_add_u32 s3, s3, {SCR}\nv_add_u32 v248, s3, {vL16}\ns_mul_i32 s3, {sW}, 20480\nv_add_u32 v249, s3, {vL16}")
        self.poll(sFHp, 31, layer+1, f"D{layer}.poll")
        DEPTH = 5
        AF = lambda st, i: q(((st % DEPTH)*4 + i)*4, 4, "a")
        slots = lambda st: (0, 2) if st == 13 else (0, 1, 2, 3)
        def aloads(st):
            r = []
            if st < 12:
                r.append(p.mk(f"s_add_u32 {sT[1]}, {sHL}, {st*4096}"))
                r += [p.mkvm(f"buffer_load_dwordx4 {AF(st,i)}, v{244+i}, s[4:7], {sT[1]} offen sc1") for i in range(4)]
            else:
                so = sHL12 if st == 12 else sHL13
                for i in slots(st):
                    b = ((st % DEPTH)*4 + i)*4
                    r.append(p.mkvm(f"buffer_load_dwordx2 a[{b}:{b+1}], v{176+i}, s[4:7], {so} offen sc1"))
                    r.append(p.mkvm(f"buffer_load_dwordx2 a[{b+2}:{b+3}], v{176+i}, s[4:7], {so} offen offset:512 sc1"))
            return r
        look = o.get("lookD", 3)
        def breg(st, t):
            f = (st-7)*5 + t
            return q(160 + 4*f, 4, "a") if f < 24 else q(80 + 4*(f-24), 4, "a")
        BF = lambda st, t: q(112 + (st & 1)*20 + t*4) if st < 7 else breg(st, t)
        late = self.regload(sW2, 7*5120 + 24*1024, [q(80+4*k, 4, "a") for k in range(11)], sT[3])
        extra = {k: [] for k in range(14)}
        for st in range(look): p.add(aloads(st))
        for st in range(look, 14): extra[st-look] += aloads(st)
        for k, it in enumerate(late): extra[2 + k//2].append(it)
        nxt = {}
        if not final:
            d1 = self.dma(sWQ, 0, 0, 20480)
            per = 3
            for i in range(-(-len(d1)//per)): extra[7+i] += d1[i*per:(i+1)*per]
            self.wq_early = self.toks(d1)
        def dsr(st):
            if st >= 7: return []
            if st < 3: return [f"ds_read_b128 {BF(st,t)}, v248 offset:{st*5120 + t*1024}" for t in range(5)]
            return [f"ds_read_b128 {BF(st,t)}, v249 offset:{(st-3)*5120 + t*1024}" for t in range(5)]
        ACC = lambda i, t: q(32 + (i*5+t)*4)
        NT = 11
        def mf(st): return [mfma(ACC(i, t), BF(st, t), AF(st, i), "0" if st == 0 else ACC(i, t)) for t in range(5) for i in slots(st)]
        pre = {0: lambda: p.wait(*self.toks(w2hi)), 5: lambda: p("s_barrier")}
        for k in range(4):
            f0 = pre.get(3+k)
            pre[3+k] = (lambda k=k, f0=f0: (p.wait(*self.w2lo[k]), f0 and f0()))
        ex_main = {k: v for k, v in extra.items() if k < NT}
        self.gemm_pass(NT, mf, dsr, ex_main, pre)
        rest = []
        for k in range(NT, 14): rest += extra[k]
        wt = []
        for i in range(4):
            main = [[p.mk(mfma(ACC(i, t), BF(st, t), AF(st, i), ACC(i, t)))] for st in range(NT, 14) if i in slots(st) for t in range(5)]
            if i == 0 and rest: main = interleave(main, rest, start=0, per=1, every=1)
            if i > 0:
                w = self.scr_writes(i-1, 240); wt += self.toks(w)
                main = interleave(main, w, start=4, per=1, every=1)
            p.add(main)
        self.stamp(f"D{layer}.mm")
        self.reduce_epilogue(240, wt, True, final, 2, name=f"D{layer}")

    def finish(self):
        p = self.p
        p.label("L_done")
        if self.stamps:
            p(f"s_memtime s[{STAMP0}:{STAMP0+1}]")
            p.waitall()
            p(f"v_writelane_b32 v250, s{STAMP0}, 63")
            p(f"s_lshl_b32 s3, s2, 2\ns_add_u32 s3, s3, {sW}\ns_lshl_b32 s3, s3, 8\ns_add_u32 s3, s3, {STAMP_OFF}")
            p.vm(f"buffer_store_dword v250, {vL4}, s[4:7], s3 offen")
        p("s_endpgm")
        p.forget()
        p.label("L_abort")
        p("s_load_dwordx2 s[52:53], s[0:1], 72\nv_mov_b32 v32, 0\nv_mov_b32 v33, 1\ns_waitcnt lgkmcnt(0)")
        p.vm("global_atomic_add v32, v33, s[52:53]")
        p.waitall()
        p.label("L_exit")
        p("s_endpgm")

    def build(self):
        p = self.p
        self.setup()
        if self.stamps: p("v_mov_b32 v250, 0")
        self.stamp("start")
        late0 = {s: self.dma(sWQ, s*20480, s*20480, 5120) for s in range(5)}
        late0[5] = self.dma(sWQ, 102400, 102400, 12800)
        p.add(late0[0]); first = late0[0]
        self.setup2()
        class Done(list): pass
        l0 = dict(late0);
        seq = [("A", 0), ("B", 0), ("C", 0), ("D", 0), ("A", 1), ("B", 1), ("C", 1), ("D", 1)]
        for ph, layer in seq:
            if ph == "A":
                if layer == 0:
                    toks0 = self.toks(first)
                    l0[0] = [I("", needs=(), kind="waitonly")]
                    self._stage0 = toks0
                    late = l0
                else:
                    late = {4: self.dma(sWQ, 81920, 81920, 5120), 5: self.dma(sWQ, 102400, 102400, 12800)}
                    p.add(late[4]);
                    self.poll(sFXp, 15, 2, "A1.poll")
                    late[4] = []
                if layer == 0: p.wait(*[])
                self.phase_A_wrap(layer, late)
            elif ph == "B": self.phase_B(layer)
            elif ph == "C": self.phase_C(layer)
            else: self.phase_D(layer)
            if self.stop_after == f"{ph}{layer}":
                break
        self.finish()
        return p.text()
    def phase_A_wrap(self, layer, late):
        if layer == 0:
            t0 = self._stage0
            orig = self.toks
            late = dict(late); late[0] = []
            self._extra_stage0 = t0
            class L(list): pass
            holder = I("", kind="waitonly"); holder.tok = t0[-1]
            late[0] = [holder]
        self.phase_A(layer, late)

if __name__ == "__main__":
    import sys
    from asmgen import multi_file, NAME
    from gen_prep import gen_prep, PREP_GRID, PREP_LDS
    def make(fn, **kw):
        m = Main(**kw); body = m.build()
        txt = multi_file([("prep_kernel", gen_prep(), 96, 64, 96), ("main_kernel", body, 512, 96, 256)],
                         [("prep_kernel", PREP_GRID, 256, PREP_LDS), ("main_kernel", 256, 256, LDS_BYTES)])
        open(fn, "w").write(txt)
        open(fn + ".stamps", "w").write("\n".join(m.stamp_names))
        print(fn, len(txt), "bytes", "nop states", m.p.nop_states)
    make("k_fast.s", pol="")
    make("k_sc1.s", pol="sc1")
    make("k_fast_nostamp.s", pol="", stamps=False)
    make("k_sc1_nostamp.s", pol="sc1", stamps=False)
    for st in ("A0","B0","C0","D0"): make(f"k_stop_{st}.s", pol="sc1", stop_after=st)
```

```python
from prog import *
from layout import *

def magic(d): return -(-(1 << 32) // d)
def sdiv(p, q, r, x, d, tmp):
    p(f"s_mul_hi_u32 {q}, {x}, {magic(d)}\ns_mul_i32 {tmp}, {q}, {d}\ns_sub_u32 {r}, {x}, {tmp}")

def srd(p, base, ptr, nbytes):
    p(f"s_mov_b32 s{base}, s{ptr}\ns_mov_b32 s{base+1}, s{ptr+1}\ns_mov_b32 s{base+2}, {nbytes}\ns_mov_b32 s{base+3}, 0x20000")

NWG_X, NWG_Q, NWG_1, NWG_O, NWG_2, NWG_Z = 128, 80, 80, 40, 112, 48
PREP_GRID = NWG_X + NWG_Q + NWG_1 + NWG_O + NWG_2 + NWG_Z
PREP_LDS = 32768

def stage_rows(p, srdn, vsrc, sbase, sA, sB, sLds):
    toks = []
    p(f"s_mov_b32 s40, {sbase}\ns_mov_b32 s42, {sLds}")
    for n in range(8):
        if n & 1: p(f"s_add_u32 s41, s40, {sA}")
        else: p(f"s_mov_b32 s41, s40")
        p(f"s_mov_b32 m0, s42")
        toks.append(p.vm(f"buffer_load_dwordx4 {vsrc}, s[{srdn}:{srdn+3}], s41 offen lds"))
        p(f"s_add_u32 s42, s42, 1024")
        if n & 1: p(f"s_add_u32 s40, s40, {sB}")
    return toks

def cs_reduce(p, pol):
    p("v_add_u32 v13, s17, v7")
    t = [p.ds("ds_write_b32 v13, v32"), p.ds("ds_write_b32 v13, v36 offset:256")]
    p.wait(*t)
    L = p.newlabel("P_skip")
    p(f"s_barrier\ns_cmp_ge_u32 s16, 2\ns_cbranch_scc1 {L}\ns_lshl_b32 s27, s16, 8\nv_add_u32 v13, s27, v7\ns_add_u32 s26, s26, s27")
    for k in range(4): p.ds(f"ds_read_b32 v{32+k}, v13 offset:{k*8192}")
    p("v_add_f32 v32, v32, v33\nv_add_f32 v34, v34, v35\nv_add_f32 v32, v32, v34")
    p.vm(f"buffer_store_dword v32, v7, s[4:7], s26 offen {pol}")
    p.label(L)
def fin(p, stamps):
    if stamps:
        p.waitall()
        p(f"s_memrealtime s[58:59]\ns_lshl_b32 s60, s2, 2\ns_add_u32 s60, s60, s16\ns_lshl_b32 s60, s60, 4\ns_add_u32 s60, s60, {PSTAMP_OFF}\ns_waitcnt lgkmcnt(0)\nv_mov_b32 v90, s56\nv_mov_b32 v91, s58\nv_mov_b32 v92, s62\nv_mov_b32 v93, s64\ns_mov_b64 exec, 1")
        p.vm("buffer_store_dwordx4 v[90:93], off, s[4:7], s60")
    p("s_endpgm")

def gen_prep(pol="sc1", stamps=False, code_bytes=0, touch=True, tlbw=False, out_touch=True):
    p = Prog()
    if stamps: p("s_memrealtime s[56:57]")
    p(f"""
    s_cmp_ge_u32 s2, {PREP_GRID}
    s_cbranch_scc1 P_end
    s_load_dwordx4 s[44:47], s[0:1], 0       ; x, wqkv
    s_load_dwordx2 s[48:49], s[0:1], 16      ; wo
    s_load_dwordx2 s[50:51], s[0:1], 32      ; w1
    s_load_dwordx2 s[52:53], s[0:1], 48      ; w2
    s_load_dwordx2 s[54:55], s[0:1], 80      ; ws
    v_lshrrev_b32 v1, 6, v0
    v_and_b32 v2, 63, v0                     ; lane
    v_readfirstlane_b32 s16, v1              ; wave
    v_and_b32 v3, 15, v2                     ; c
    v_lshrrev_b32 v4, 4, v2                  ; g
    v_lshlrev_b32 v5, 4, v2                  ; lane*16
    v_lshlrev_b32 v6, 3, v2                  ; lane*8
    v_lshlrev_b32 v7, 2, v2                  ; lane*4
    s_lshl_b32 s17, s16, 13
    s_waitcnt lgkmcnt(0)
    """)
    srd(p, 4, 54, WS_BYTES)
    if stamps: p("s_memrealtime s[62:63]\ns_memrealtime s[64:65]")
    def mid():
        if stamps: p("s_memrealtime s[64:65]\ns_waitcnt lgkmcnt(0)")
    def touch_lines():
        if not touch: return
        p(f"""
        s_and_b32 s33, s2, 7
        s_lshr_b32 s34, s2, 3
        s_lshl_b32 s34, s34, 2
        s_add_u32 s34, s34, s16
        s_min_u32 s34, s34, 147
        s_lshl_b32 s34, s34, 13
        s_mul_i32 s35, s33, 327680
        s_add_u32 s35, s35, {O_OFF}
        s_mul_i32 s36, s33, 884736
        s_add_u32 s36, s36, {H_OFF-327680}
        s_cmp_lt_u32 s34, 327680
        s_cselect_b32 s35, s35, s36
        s_add_u32 s35, s35, s34
        v_lshlrev_b32 v94, 7, v2
        """)
        p.vm("buffer_load_dword v95, v94, s[4:7], s35 offen")
    def dst_touch(sreg):
        if tlbw: p.vm(f"buffer_load_dword v89, off, s[4:7], {sreg}")
    p(f"""
    s_cmp_lt_u32 s2, {NWG_X}
    s_cbranch_scc1 P_x
    s_cmp_ge_u32 s2, {PREP_GRID-NWG_Z}
    s_cbranch_scc1 P_zero
    ; common for weight tasks: tr address pieces
    v_lshrrev_b32 v8, 2, v3                  ; r = c>>2
    v_and_b32 v9, 3, v3                      ; c' = c&3
    v_lshl_add_u32 v10, v4, 3, v8            ; 8g + r
    v_lshlrev_b32 v10, 8, v10
    v_add_u32 v10, s17, v10                  ; wavebase + (8g+r)*256
    v_lshl_add_u32 v11, v9, 4, v10
    v_lshl_add_u32 v12, v9, 3, v10
    s_sub_u32 s18, s2, {NWG_X}
    s_lshl_b32 s18, s18, 2
    s_add_u32 s18, s18, s16
    s_cmp_ge_u32 s18, {4*(NWG_Q+NWG_1)}
    s_cbranch_scc1 P_o2
    """)
    for t in range(4):
        p(f"v_cmp_eq_u32 vcc, {t}, v8\nv_mov_b32 v13, 0x3f803f80\nv_cndmask_b32 v{16+4*t}, 0, v13, vcc")
        for k in range(1, 4): p(f"v_mov_b32 v{16+4*t+k}, v{16+4*t}")
    p(f"s_cmp_ge_u32 s18, {4*NWG_Q}\ns_cbranch_scc1 P_w1")

    sdiv(p, "s19", "s20", "s18", 20, "s21")
    srd(p, 8, 46, 640*1920*2)
    p(f"""
    v_min_u32 v13, 14, v3
    v_mul_u32_u24 v14, 52, v13
    v_lshrrev_b32 v14, 8, v14                ; seg = c/5
    v_mul_u32_u24 v15, 1200, v14             ; seg*(1280-80)
    v_lshl_add_u32 v15, v13, 4, v15          ; + c*16
    v_mul_u32_u24 v14, 3840, v4
    v_add_u32 v15, v15, v14                  ; + (lane>>4)*rowstride
    s_mul_i32 s22, s20, {32*3840}
    s_mul_i32 s23, s19, 80
    s_add_u32 s22, s22, s23
    """)
    tk = stage_rows(p, 8, "v15", "s22", 4*3840, 8*3840, "s17")
    p(f"""
    v_lshlrev_b32 v13, 11, v4
    v_add_u32 v13, s17, v13                  ; wavebase + 8g*256
    v_lshl_add_u32 v13, v8, 1, v13           ; + 2*(c>>2)
    v_mad_u32_u24 v14, v9, 40, v13
    v_and_b32 v15, 1, v3
    v_mad_u32_u24 v15, v15, 40, v13
    s_mul_i32 s22, s19, {WQ_SL}
    s_mul_i32 s23, s20, 5120
    s_add_u32 s23, s23, s22
    s_mov_b32 s24, 71680
    s_cmp_ge_u32 s20, 16
    s_cselect_b32 s24, {(51200-16*5120) & 0xffffffff}, s24
    s_add_u32 s23, s23, s24
    s_add_u32 s24, s23, 4096
    s_mul_i32 s25, s20, 2560
    s_add_u32 s25, s25, s22
    s_lshr_b32 s26, s18, 2
    s_lshl_b32 s26, s26, 9
    s_add_u32 s26, s26, {CSQ_OFF}
    """)
    dst_touch("s23"); touch_lines()
    p.wait(*tk); mid()
    tiles = [("tr", 80), ("tr", 120), ("tr", 160), ("tr", 200), ("u16", "v14", 112), ("tr", 0), ("tr", 40), ("u16", "v15", 32)]
    for t, d in enumerate(tiles):
        f = 40 + 4*t
        if d[0] == "tr":
            p.ds(f"ds_read_b64_tr_b16 v[{f}:{f+1}], v12 offset:{d[1]}")
            p.ds(f"ds_read_b64_tr_b16 v[{f+2}:{f+3}], v12 offset:{d[1]+1024}")
        else:
            b = 80 if t == 4 else 88
            for j in range(8): p.ds(f"ds_read_u16 v{b+j}, {d[1]} offset:{d[2]+256*j}")
    for t, d in enumerate(tiles):
        f = 40 + 4*t
        if d[0] == "u16":
            b = 80 if t == 4 else 88
            for k in range(4): p(f"v_lshl_or_b32 v{f+k}, v{b+2*k+1}, 16, v{b+2*k}")
        acc = 32 + 4*(t >> 2)
        p(f"v_mfma_f32_16x16x32_bf16 v[{acc}:{acc+3}], v[{16+4*(t&3)}:{19+4*(t&3)}], v[{f}:{f+3}], " + ("0" if t & 3 == 0 else f"v[{acc}:{acc+3}]"))
        if t < 4: p.vm(f"buffer_store_dwordx4 v[{f}:{f+3}], v5, s[4:7], s23 offen offset:{t*1024} {pol}")
        elif t == 4: p.vm(f"buffer_store_dwordx4 v[{f}:{f+3}], v5, s[4:7], s24 offen {pol}")
        elif t < 7: p.vm(f"buffer_store_dwordx4 v[{f}:{f+3}], v5, s[4:7], s25 offen offset:{(t-5)*1024} {pol}")
        else:
            p(f"""
            v_and_b32 v13, 1, v3
            v_lshl_add_u32 v13, v8, 1, v13
            v_lshl_add_u32 v13, v4, 3, v13
            v_lshlrev_b32 v13, 4, v13
            s_mov_b32 exec_lo, 0x33333333
            s_mov_b32 exec_hi, 0x33333333
            """)
            p.vm(f"buffer_store_dwordx4 v[{f}:{f+3}], v13, s[4:7], s25 offen offset:2048 {pol}")
            p("s_mov_b64 exec, -1")
    cs_reduce(p, pol)
    fin(p, stamps)
    p.forget()

    p.label("P_w1")
    p(f"s_sub_u32 s18, s18, {4*NWG_Q}")
    sdiv(p, "s19", "s20", "s18", 20, "s21")
    srd(p, 8, 50, 640*1728*2)
    p(f"""
    s_mul_i32 s22, s19, 192
    s_lshr_b32 s23, s19, 1
    s_min_u32 s23, s23, 5
    s_add_u32 s23, s23, 48
    s_lshl_b32 s23, s23, 6
    s_sub_u32 s23, s23, 192
    v_mov_b32 v13, s22
    v_mov_b32 v14, s23
    v_cmp_gt_u32 vcc, 12, v3
    v_cndmask_b32 v13, v14, v13, vcc
    v_lshl_add_u32 v15, v3, 4, v13
    v_mul_u32_u24 v14, 3456, v4
    v_add_u32 v15, v15, v14
    s_mul_i32 s22, s20, {32*3456}
    """)
    tk = stage_rows(p, 8, "v15", "s22", 4*3456, 8*3456, "s17")
    p(f"""
    s_and_b32 s22, s19, 1
    s_lshl_b32 s22, s22, 3
    v_add_u32 v13, s22, v11
    s_mul_i32 s22, s19, {W1_SL}
    s_add_u32 s22, s22, {W1_OFF}
    s_lshl_b32 s23, s20, 12
    s_add_u32 s23, s23, s22
    s_mul_i32 s25, s20, 3072
    s_add_u32 s25, s25, s22
    s_add_u32 s25, s25, 81920
    s_lshr_b32 s26, s18, 2
    s_lshl_b32 s26, s26, 9
    s_add_u32 s26, s26, {CS1_OFF}
    s_cmp_lt_u32 s19, 12
    s_cselect_b32 s27, -1, 0
    """)
    dst_touch("s23"); touch_lines()
    p.wait(*tk); mid()
    for t in range(7):
        f = 40 + 4*t
        va, off = ("v11", (t >> 1)*64 + (t & 1)*8) if t < 6 else ("v13", 192)
        p.ds(f"ds_read_b64_tr_b16 v[{f}:{f+1}], {va} offset:{off}")
        p.ds(f"ds_read_b64_tr_b16 v[{f+2}:{f+3}], {va} offset:{off+1024}")
    for t in range(7):
        f = 40 + 4*t
        if t == 6:
            for k in range(4): p(f"v_and_b32 v{f+k}, s27, v{f+k}")
        acc = 32 + 4*(t >> 2)
        p(f"v_mfma_f32_16x16x32_bf16 v[{acc}:{acc+3}], v[{16+4*(t&3)}:{19+4*(t&3)}], v[{f}:{f+3}], " + ("0" if t & 3 == 0 else f"v[{acc}:{acc+3}]"))
        if t < 4: p.vm(f"buffer_store_dwordx4 v[{f}:{f+3}], v5, s[4:7], s23 offen offset:{t*1024} {pol}")
        else: p.vm(f"buffer_store_dwordx4 v[{f}:{f+3}], v5, s[4:7], s25 offen offset:{(t-4)*1024} {pol}")
    cs_reduce(p, pol)
    fin(p, stamps)
    p.forget()

    p.label("P_o2")
    p(f"""
    s_sub_u32 s18, s18, {4*(NWG_Q+NWG_1)}
    s_cmp_ge_u32 s18, {4*NWG_O}
    s_cbranch_scc1 P_w2
    """)
    sdiv(p, "s19", "s20", "s18", 20, "s21")
    sdiv(p, "s21", "s22", "s20", 5, "s23")
    srd(p, 8, 48, 640*640*2)
    p(f"""
    s_mul_i32 s23, s21, {160*1280}
    s_mul_i32 s24, s22, {40*1280}
    s_cmp_eq_u32 s22, 4
    s_cselect_b32 s24, {16*1280}, s24
    s_mov_b32 s28, {20*1280}
    s_mov_b32 s29, {4*1280}
    s_mov_b32 s30, 1280
    s_cselect_b32 s28, {80*1280}, s28         ; A
    s_cselect_b32 s29, s30, s29               ; B
    s_cselect_b32 s30, 25600, s30             ; lane row stride
    s_add_u32 s27, s23, s24
    s_mul_i32 s31, s18, 5120
    s_add_u32 s31, s31, {WO_OFF}              ; dest
    s_branch P_o2_common
    """)
    p.label("P_w2")
    p(f"s_sub_u32 s18, s18, {4*NWG_O}")
    sdiv(p, "s19", "s20", "s18", 56, "s21")
    sdiv(p, "s21", "s22", "s20", 14, "s23")
    srd(p, 8, 52, 1728*640*2)
    p(f"""
    s_mul_i32 s23, s21, 12
    s_add_u32 s23, s23, s22
    s_add_u32 s24, s21, 48
    s_cmp_eq_u32 s22, 12
    s_cselect_b32 s23, s24, s23
    s_lshr_b32 s24, s21, 1
    s_add_u32 s24, s24, 52
    s_cmp_eq_u32 s22, 13
    s_cselect_b32 s23, s24, s23
    s_mul_i32 s27, s23, {32*1280}
    s_mov_b32 s28, {4*1280}
    s_mov_b32 s29, {8*1280}
    s_mov_b32 s30, 1280
    s_mul_i32 s31, s18, 5120
    s_add_u32 s31, s31, {W2_OFF}
    """)
    p.label("P_o2_common")
    p(f"""
    s_lshr_b32 s23, s19, 1
    s_mul_i32 s23, s23, 5
    s_and_b32 s24, s19, 1
    s_lshl_b32 s25, s24, 1
    s_add_u32 s23, s23, s25
    s_lshl_b32 s23, s23, 6
    s_add_u32 s27, s27, s23
    v_min_u32 v13, 11, v3
    v_lshlrev_b32 v13, 4, v13
    v_mul_lo_u32 v14, v4, s30
    v_add_u32 v15, v13, v14
    """)
    tk = stage_rows(p, 8, "v15", "s27", "s28", "s29", "s17")
    p(f"""
    s_lshl_b32 s25, s24, 6
    v_add_u32 v13, s25, v11
    s_cmp_eq_u32 s24, 0
    s_cselect_b32 s25, 128, 8
    v_add_u32 v14, s25, v11
    s_add_u32 s32, s31, 4096
    """)
    dst_touch("s31"); touch_lines()
    p.wait(*tk); mid()
    for t in range(5):
        f = 40 + 4*t
        va, off = ("v13", (t >> 1)*64 + (t & 1)*8) if t < 4 else ("v14", 0)
        p.ds(f"ds_read_b64_tr_b16 v[{f}:{f+1}], {va} offset:{off}")
        p.ds(f"ds_read_b64_tr_b16 v[{f+2}:{f+3}], {va} offset:{off+1024}")
    for t in range(5):
        f = 40 + 4*t
        if t < 4: p.vm(f"buffer_store_dwordx4 v[{f}:{f+3}], v5, s[4:7], s31 offen offset:{t*1024} {pol}")
        else: p.vm(f"buffer_store_dwordx4 v[{f}:{f+3}], v5, s[4:7], s32 offen {pol}")
    fin(p, stamps)
    p.forget()

    p.label("P_x")
    srd(p, 8, 44, 2048*640*2)
    p(f"""
    s_and_b32 s18, s2, 7
    s_lshl_b32 s18, s18, 4
    s_lshr_b32 s19, s2, 3
    s_add_u32 s18, s18, s19                   ; rt
    s_mul_i32 s19, s18, 20480
    s_mul_i32 s20, s16, 320
    s_add_u32 s20, s20, s19
    v_mul_u32_u24 v8, 1280, v3
    v_lshl_add_u32 v8, v4, 4, v8
    s_mul_i32 s21, s16, 5120
    s_add_u32 s21, s21, s19
    s_add_u32 s21, s21, {X_OFF}
    s_add_u32 s22, s21, 4096
    s_lshl_b32 s23, s18, 10
    s_lshl_b32 s24, s16, 3
    s_add_u32 s23, s23, s24
    s_add_u32 s23, s23, {ST_OFF}
    v_mov_b32 v10, 0
    v_mov_b32 v11, 0
    v_mov_b32 v12, 0x3f803f80
    """)
    for b in range(5):
        tx = p.vm(f"buffer_load_dwordx4 v[{16+4*b}:{19+4*b}], v8, s[8:11], s20 offen offset:{b*64}")
    dst_touch("s21"); touch_lines()
    if stamps: p.wait(tx); mid()
    for b in range(5):
        f = 16 + 4*b
        if b < 4: p.vm(f"buffer_store_dwordx4 v[{f}:{f+3}], v5, s[4:7], s21 offen offset:{b*1024} {pol}")
        else: p.vm(f"buffer_store_dwordx4 v[{f}:{f+3}], v5, s[4:7], s22 offen {pol}")
        for k in range(4):
            p(f"v_dot2_f32_bf16 v10, v{f+k}, v12, v10\nv_dot2_f32_bf16 v11, v{f+k}, v{f+k}, v11")
    p(f"""
    v_permlane32_swap_b32 v10, v11
    v_add_f32 v10, v10, v11
    v_mov_b32 v11, v10
    v_permlane16_swap_b32 v10, v11
    v_add_f32 v10, v10, v11
    v_lshrrev_b32 v13, 1, v4
    v_lshlrev_b32 v13, 5, v13
    v_lshl_add_u32 v13, v3, 6, v13
    v_mov_b32 v11, 0
    """)
    p.vm(f"buffer_store_dwordx2 v[10:11], v13, s[4:7], s23 offen {pol}")
    fin(p, stamps)
    p.forget()

    p.label("P_zero")
    p(f"""
    s_sub_u32 s18, s2, {PREP_GRID-NWG_Z}
    s_lshl_b32 s18, s18, 12
    s_add_u32 s18, s18, {KV_OFF}
    v_lshlrev_b32 v8, 4, v0
    v_mov_b32 v12, 0
    v_mov_b32 v13, 0
    v_mov_b32 v14, 0
    v_mov_b32 v15, 0
    """)
    p.vm(f"buffer_store_dwordx4 v[12:15], v8, s[4:7], s18 offen sc1")
    if code_bytes:
        p("s_getpc_b64 s[20:21]")
        p.raw("P_pc:")
        p("s_add_u32 s20, s20, main_kernel-P_pc\ns_addc_u32 s21, s21, 0\nv_lshlrev_b32 v8, 7, v0\nv_min_u32 v11, L_exit-main_kernel, v8")
        p.vm("global_load_dword v9, v11, s[20:21]")
        p(f"v_add_u32 v8, 0x8000, v8\nv_min_u32 v8, L_exit-main_kernel, v8")
        p.vm("global_load_dword v10, v8, s[20:21]")
    if out_touch:
        p("s_load_dwordx2 s[20:21], s[0:1], 64\nv_lshlrev_b32 v8, 15, v2\ns_waitcnt lgkmcnt(0)")
        p.vm("global_load_dword v11, v8, s[20:21]")
    fin(p, stamps)
    p.label("P_end")
    p("s_endpgm")
    return p.text()

if __name__ == "__main__":
    from asmgen import multi_file
    body = gen_prep()
    open("prep_only.s", "w").write(multi_file([("prep_kernel", body, 96, 64, 96)], [("prep_kernel", PREP_GRID, 256, PREP_LDS)]))
```

```python
from prog import *
from layout import *
from gen_prep import srd

K = 1024
TAB = 150*K
T_CSQ, T_CS1, T_B1, T_B2 = TAB, TAB+512, TAB+1024, TAB+1536
LDS_BYTES = 163840
SCR = 0; KVS = 70*K; W1P1 = 70*K; W1P2 = 0
LOG2E = 0x3fb8aa3b; EPS6 = 0x358637bd; EPS5 = 0x3727c5ac; RCP640 = 0x3acccccd
NEG_EPS_L2E = 0xb5c1a1cb

vST = "v0"
vL16, vL4, vL1, vL2, vQX = "v1", "v2", "v3", "v4", "v5"
vA = ["v6", "v7"]
vSTr, vSTw, vXW, vXWh = "v8", "v9", "v10", "v11"
vTab4, vTabC, vP, vT0 = "v12", "v13", "v14", "v15"
RES = 16
vL16k, vOs, vHs = "v26", "v27", "v28"
SCRA = 29
vKVw, vKVr = "v33", "v34"
W = 36
W2V = 168
sW, sG, sM, sRQ, sCB = "s16", "s17", "s18", "s19", "s20"
s4K = ["0", "s21", "s22", "s23", "s24"]
sWQ, sW1, sWO, sW2 = "s25", "s26", "s27", "s28"
sOW = ["s29", "s30"]; sOL = ["s31", "s32", "s33", "s34"]
sHW, sHS, sHL, sHL12, sHL13 = "s35", "s36", "s37", "s38", "s39"
sFXw, sFXp, sFOw, sFOp, sFHw, sFHp = "s40", "s41", "s42", "s43", "s44", "s45"
sKV, sKVw = "s46", "s47"
sODD = "s[48:49]"; sLO2 = "s[50:51]"
sT = ["s52", "s53", "s54", "s55", "s56", "s57"]
sSpin = "s60"; sOUT = "s61"
STAMP0 = 64
sEPS2 = "s[76:77]"; sL2E2 = "s[78:79]"; sNEL2 = "s[80:81]"
BGREG = [("s82", "s83"), ("s84", "s85"), ("s86", "s87"), ("s88", "s89")]

def q(b, n=4, f="v"): return f"{f}[{b}:{b+n-1}]"
def p2(b): return f"v[{b}:{b+1}]"
def mfma(d, a, b, c): return f"v_mfma_f32_16x16x32_bf16 {d}, {a}, {b}, {c}"
def ldsaddr(off): return [vL16, vL1, vL2][off >> 16], off & 0xffff
def bc(reg):
    return p2(reg & ~1), reg & 1
def pk(op, d, srcs):
    ops = []; lo = []; hi = []
    for kind, v in srcs:
        if kind == "p": ops.append(p2(v)); lo.append(0); hi.append(1)
        elif kind == "b": o, s = bc(v); ops.append(o); lo.append(s); hi.append(s)
        else: ops.append(v); lo.append(0); hi.append(1)
    return f"{op} {p2(d)}, {', '.join(ops)} op_sel:[{','.join(map(str,lo))}] op_sel_hi:[{','.join(map(str,hi))}]"

class Stream:
    def __init__(self, items): self.items = items; self.k = 0
    def take(self, n=None):
        n = len(self.items) - self.k if n is None else min(n, len(self.items) - self.k)
        r = self.items[self.k:self.k+n]; self.k += n; return r
    def left(self): return len(self.items) - self.k
    def toks(self, a=0, b=None): return Main.toks(self.items[a:b])

def spread(extra, items, start, end):
    n = end - start
    for i, it in enumerate(items): extra[start + i*n//len(items)].append(it)

def ramp(loads, burst, cap, look, nsteps):
    flat = [(st, it) for st, l in enumerate(loads) for it in l]
    first = [it for st, it in flat[:burst]]
    ex = {k: [] for k in range(nsteps)}; s = 0
    for st, it in flat[burst:]:
        while len(ex[s]) >= cap or s < st - look: s += 1
        assert s < st, (st, s)
        ex[s].append(it)
    return first, ex

DEFAULT = dict(rampA=(6, 3, 6), rampC=(6, 3, 6), rampD=(8, 5, 4),
    A1_wq=(0, 16),
    a2_wo=6, A2_wo=(0, 10), A2_w1=(6, 20), a4_w1=0, a5_w1=0, a5_w2v=4,
    B_w1=99, B_w2v=0, b2_w2v=99, b2mid_w2a=0, b2_w1p2=5, C1_w1p2=(0, 14), C1_w2a=None, C2_w2a=(0, 14),
    C2_wq=None, c3_wq=4, c3_w2l=4, D_w2l=(0, 7), D_wq=(4, 11), d2_wq=5, d2_wo=0,
    touch=1, tlb=1)

class Main:
    def __init__(self, pol="", stamps=True, stop_after=None, opts=None, dual=None):
        self.dual = dual
        self.p = Prog(); self.pol = pol
        if dual == "slow": self.p.nlab = 1000
        self.stamps = stamps; self.nst = 0; self.stop_after = stop_after
        self.o = dict(DEFAULT); self.o.update(opts or {})
        self.stamp_names = []; self.nstream = 0
    def stamp(self, name):
        if not self.stamps: return
        p = self.p; k = self.nst; self.nst += 1; self.stamp_names.append(name); assert k < 60
        p(f"s_memtime s[{STAMP0}:{STAMP0+1}]"); p.waitall(vm=False); p(f"v_writelane_b32 {vST}, s{STAMP0}, {k}")
    @staticmethod
    def toks(items):
        out = []
        for it in items:
            for x in (it if isinstance(it, (list, tuple)) else [it]):
                if x.tok is not None: out.append(x.tok)
        return out
    def ld(self, text):
        return self.p.mk("s_nop 0") if self.o.get("nobg") else self.p.mkvm(text)
    def dma(self, src, src_off, lds_off, wave_bytes, slot):
        p = self.p; sm, so = BGREG[slot]; items = []
        assert lds_off + 4*wave_bytes <= TAB
        offs = list(range(0, wave_bytes - 1023, 1024))
        if wave_bytes % 1024: offs.append(wave_bytes - 1024)
        base = 0
        for k, off in enumerate(offs):
            it = []
            if k == 0:
                it += [p.mk(f"s_mul_i32 {sm}, {sW}, {wave_bytes}"), p.mk(f"s_add_u32 {so}, {sm}, {src}"),
                       p.mk(f"s_add_u32 {so}, {so}, {src_off}"), p.mk(f"s_add_u32 {sm}, {sm}, {lds_off}")]
            elif off - base >= 4096:
                d = off - base; base = off
                it += [p.mk(f"s_add_u32 {so}, {so}, {d}"), p.mk(f"s_add_u32 {sm}, {sm}, {d}")]
            it.append(I(f"s_mov_b32 m0, {sm}", kind="m0set"))
            it.append(self.ld(f"buffer_load_dwordx4 {vL16}, s[4:7], {so} offen offset:{off-base} {self.o.get('wpol','')} lds"))
            items.append(it)
        return items
    def regload(self, src, src_off, regs, slot):
        p = self.p; so = BGREG[slot][1]; items = []
        for k, r in enumerate(regs):
            it = []
            if k % 4 == 0: it.append(p.mk(f"s_add_u32 {so}, {src}, {src_off + k*1024}"))
            it.append(self.ld(f"buffer_load_dwordx4 {r}, {vL16}, s[4:7], {so} offen offset:{(k%4)*1024} {self.o.get('wpol','')}"))
            items.append(it)
        return items
    def poll(self, soff, mask, val, name):
        p = self.p; L = p.newlabel("L_poll")
        p(f"v_and_b32 {vT0}, {mask*4+3}, {vL4}\ns_mov_b32 {sSpin}, 0\ns_mov_b32 {sT[0]}, {val}")
        p.label(L)
        p.vm(f"buffer_load_dword {vP}, {vT0}, s[4:7], {soff} offen sc1")
        p(f"s_add_u32 {sSpin}, {sSpin}, 1\ns_cmp_gt_u32 {sSpin}, 0x40000\ns_cbranch_scc1 L_abort")
        p.waitall(lgkm=False)
        p(f"v_cmp_gt_u32 vcc, {sT[0]}, {vP}\ns_cbranch_vccnz {L}")
        self.stamp(name)
    def signal(self, soff, val, toks):
        p = self.p
        p(f"v_mov_b32 {vT0}, {val}")
        p.wait(*toks)
        p("s_mov_b64 exec, 1")
        p.vm(f"buffer_store_dword {vT0}, off, s[4:7], {soff} {self.pol}")
        p("s_mov_b64 exec, -1")
    def lda(self, text):
        return self.p.mk("s_nop 0") if self.o.get("noA") else self.p.mkvm(text.replace("sc1", self.o.get("apol", "sc1")))
    def a_loads(self, ks):
        return [self.lda(f"buffer_load_dwordx4 {q((ks*2+rt)*4,4,'a')}, {vA[rt]}, s[4:7], {s4K[ks>>2]} offen offset:{(ks&3)*1024} sc1") for rt in range(2)]
    def stats_loads(self, base):
        return [self.p.mkvm(f"buffer_load_dwordx4 {q(base+rt*4)}, {vSTr}, s[4:7], 0 offen offset:{rt*1024} sc1") for rt in range(2)]
    def stats_calc(self, base, rs, mrs):
        p = self.p; per = []
        for rt in range(2):
            b = base + rt*4
            per.append([p.mk(s.strip()) for s in f"""v_add_f32 v{b}, v{b}, v{b+1}
            v_add_f32 v{b+2}, v{b+2}, v{b+3}
            v_add_f32 v{b}, v{b}, v{b+2}
            v_mov_b32 v{b+1}, v{b}
            v_permlane16_swap_b32 v{b}, v{b+1}
            v_add_f32 v{b}, v{b}, v{b+1}
            v_mov_b32 v{b+1}, v{b}
            v_permlane32_swap_b32 v{b}, v{b+1}
            v_mul_f32 v{b}, {RCP640}, v{b}
            v_mul_f32 v{b+1}, {RCP640}, v{b+1}
            v_fma_f32 v{b+1}, -v{b}, v{b}, v{b+1}
            v_max_f32 v{b+1}, 0, v{b+1}
            v_add_f32 v{b+1}, {EPS5}, v{b+1}
            v_rsq_f32 v{rs+rt}, v{b+1}
            v_mul_f32_e64 v{mrs+rt}, -v{b}, v{rs+rt}""".split("\n")])
        return [x for pair in zip(*per) for x in pair]
    def gemm_pass(self, nsteps, mf, dsr, extra=None, pre=None):
        p = self.p; extra = extra or {}; pre = pre or {}
        if 0 in pre: pre[0]()
        for s in dsr(0): p.ds(s)
        for st in range(nsteps):
            main = [[p.mk(m)] for m in mf(st)]
            nx = dsr(st+1) if st+1 < nsteps else []
            if st+1 < nsteps and (st+1) in pre:
                p.add(main[0]); main = main[1:]
                pre[st+1]()
            n = len(main)
            if nx: main = interleave(main, [p.mkds(s) for s in nx], start=0, per=1, every=max(1, n // len(nx)))
            ex = extra.get(st, [])
            if ex:
                per = -(-len(ex) // n)
                every = max(1, n // len(ex)) if per == 1 else 1
                main = interleave(main, ex, start=1 if every > 1 else 0, per=per, every=every)
            p.add(main)
    def weave(self, valu, bg):
        main = [[x] for x in valu]
        if bg: main = interleave(main, bg, start=1, per=1, every=max(1, len(main)//len(bg)))
        self.p.add(main)

    def setup(self):
        p = self.p
        p(f"""
        s_cmp_ge_u32 s2, 256
        s_cbranch_scc1 L_exit
        s_load_dwordx2 s[52:53], s[0:1], 80
        s_load_dwordx2 s[54:55], s[0:1], 64
        s_load_dwordx2 s[56:57], s[0:1], 40
        s_load_dwordx2 s[62:63], s[0:1], 56
        v_lshrrev_b32 v40, 6, v0
        v_and_b32 v41, 63, v0
        v_readfirstlane_b32 {sW}, v40
        v_and_b32 v42, 15, v41                   ; c
        v_lshrrev_b32 v43, 4, v41                ; g
        v_lshlrev_b32 {vL16}, 4, v41
        v_lshlrev_b32 {vL4}, 2, v41
        v_and_b32 v200, 127, v0
        s_and_b32 {sG}, s2, 7
        s_lshl_b32 {sG}, {sG}, 1
        s_lshr_b32 {sM}, s2, 7
        s_add_u32 {sG}, {sG}, {sM}
        s_lshr_b32 {sM}, s2, 3
        s_and_b32 {sM}, {sM}, 15
        s_mul_i32 {sWQ}, {sM}, {WQ_SL}
        s_lshl_b32 s58, {sG}, 3
        s_lshl_b32 s3, {sW}, 1
        s_add_u32 s58, s58, s3                   ; rtA
        s_mul_i32 s3, s58, 20480
        s_add_u32 s3, s3, {X_OFF}
        v_add_u32 {vA[0]}, s3, {vL16}
        s_add_u32 s3, s3, 20480
        v_add_u32 {vA[1]}, s3, {vL16}
        s_mov_b32 s21, 4096
        s_mov_b32 s22, 8192
        s_mov_b32 s23, 12288
        s_mov_b32 s24, 16384
        s_mov_b32 s6, {WS_BYTES}
        s_mov_b32 s7, 0x20000
        s_waitcnt lgkmcnt(0)
        s_mov_b32 s4, s52
        s_mov_b32 s5, s53
        """)
    def setup2(self):
        p = self.p
        srd(p, 8, 54, 2048*640*2); srd(p, 12, 56, 1728*2); srd(p, 68, 62, 1280)
        p(f"""
        s_mov_b32 s52, s58
        s_lshl_b32 {sRQ}, {sG}, 1
        s_lshr_b32 s3, {sM}, 3
        s_add_u32 {sRQ}, {sRQ}, s3
        s_and_b32 {sCB}, {sM}, 7
        s_mul_i32 {sW1}, {sM}, {W1_SL}
        s_add_u32 {sW1}, {sW1}, {W1_OFF}
        s_mul_i32 {sWO}, {sCB}, {WO_SL}
        s_mul_i32 s3, {sW}, 25600
        s_add_u32 {sWO}, {sWO}, s3
        s_add_u32 {sWO}, {sWO}, {WO_OFF}
        s_mul_i32 {sW2}, {sCB}, {W2_SL}
        s_mul_i32 s3, {sW}, 71680
        s_add_u32 {sW2}, {sW2}, s3
        s_add_u32 {sW2}, {sW2}, {W2_OFF}
        v_add_u32 {vL1}, 0x10000, {vL16}
        v_add_u32 {vL2}, 0x20000, {vL16}
        v_add_u32 {vL16k}, 4096, {vL16}
        v_lshrrev_b32 v44, 2, v42
        v_and_b32 v45, 1, v42
        v_lshl_add_u32 v44, v44, 1, v45
        v_lshl_add_u32 v44, v43, 3, v44
        v_lshlrev_b32 {vQX}, 4, v44
        s_lshl_b32 s53, {sRQ}, 2
        s_add_u32 s53, s53, {sW}
        s_lshr_b32 s54, s52, 2
        s_and_b32 s55, {sW}, 1
        v_lshlrev_b32 v44, 6, v42                ; c*64
        v_lshl_add_u32 v45, v43, 4, v44
        s_lshl_b32 s3, s52, 10
        s_add_u32 s3, s3, {ST_OFF}
        v_add_u32 {vSTr}, s3, v45
        v_lshrrev_b32 v45, 1, v43
        v_lshl_add_u32 v45, v45, 5, v44
        s_lshl_b32 s3, s53, 10
        s_lshl_b32 s56, {sCB}, 2
        s_add_u32 s3, s3, s56
        s_add_u32 s3, s3, {ST_OFF}
        v_add_u32 {vSTw}, s3, v45
        s_lshr_b32 s56, {sCB}, 1
        s_mul_i32 s56, s56, 5
        s_and_b32 s57, {sCB}, 1
        s_mul_i32 s3, s57, 3
        s_add_u32 s3, s3, s56                    ; b0
        s_lshl_b32 {sOUT}, s3, 6
        s_mul_i32 s62, s53, 20
        s_add_u32 s3, s3, s62
        s_lshl_b32 s3, s3, 10
        s_add_u32 s3, s3, {X_OFF}
        v_add_u32 {vXW}, s3, {vL16}
        s_add_u32 s3, s56, 2
        s_add_u32 s3, s3, s62
        s_lshl_b32 s3, s3, 10
        s_lshl_b32 s63, s57, 3
        s_add_u32 s3, s3, s63
        s_add_u32 s3, s3, {X_OFF}
        v_add_u32 {vXWh}, s3, {vL16}
        s_mul_i32 s3, s53, 20480
        s_add_u32 {sOUT}, {sOUT}, s3
        v_lshlrev_b32 {vTab4}, 4, v43
        v_add_u32 {vTab4}, {TAB}, {vTab4}
        v_lshlrev_b32 {vTabC}, 2, v42
        v_add_u32 {vTabC}, {TAB}, {vTabC}
        s_lshl_b32 s3, s52, 2
        s_lshr_b32 s62, {sM}, 2
        s_add_u32 s3, s3, s62
        s_mul_i32 s3, s3, 5120
        s_and_b32 s62, {sM}, 3
        s_lshl_b32 s63, s62, 10
        s_add_u32 s3, s3, s63
        s_add_u32 {sOW[0]}, s3, {O_OFF}
        s_add_u32 {sOW[1]}, {sOW[0]}, 20480
        s_mul_i32 s62, s62, 1020
        s_sub_u32 s62, 4096, s62
        v_add_u32 {vOs}, s62, {vL16}
        s_and_b32 s62, {sM}, 1
        s_lshl_b32 s62, s62, 3
        v_add_u32 {vHs}, s62, {vL16}
        """)
        for i in range(4):
            p(f"""
            s_add_u32 s3, {sW}, {1+i}
            s_and_b32 s3, s3, 3
            s_mul_i32 s63, s3, 15360
            s_add_u32 s63, s63, {SCR + (i*5120 if i < 3 else 0)}
            v_add_u32 v{SCRA+i}, s63, {vL16}
            s_lshl_b32 s62, {sRQ}, 2
            s_add_u32 s3, s3, s62
            s_lshl_b32 s3, s3, 2
            s_add_u32 s3, s3, {sW}
            s_mul_i32 s3, s3, 5120
            s_add_u32 {sOL[i]}, s3, {O_OFF}
            """)
        p(f"""
        s_mul_i32 s3, {sW}, 5120
        s_add_u32 s3, s3, {KVS}
        v_add_u32 {vKVw}, s3, {vL16}
        s_mul_i32 s3, {sW}, 1280
        s_add_u32 s3, s3, {KVS}
        v_add_u32 {vKVr}, s3, {vL4}
        s_mul_i32 s3, s54, 221184
        s_lshl_b32 s62, s55, 11
        s_add_u32 s3, s3, s62
        s_add_u32 s3, s3, {H_OFF}
        s_mul_i32 s62, {sM}, 12288
        s_add_u32 {sHW}, s3, s62
        s_lshr_b32 s62, {sM}, 1
        s_add_u32 s62, s62, 48
        s_lshl_b32 s62, s62, 12
        s_add_u32 s3, s3, s62
        s_cmp_lt_u32 {sM}, 12
        s_cselect_b32 {sHS}, s3, {WS_BYTES}
        s_mul_i32 s3, {sRQ}, 221184
        s_add_u32 s3, s3, {H_OFF}
        s_mul_i32 s62, {sW}, 49152
        s_add_u32 {sHL}, s3, s62
        s_add_u32 s62, {sW}, 48
        s_lshl_b32 s62, s62, 12
        s_add_u32 {sHL12}, s3, s62
        s_lshr_b32 s62, {sW}, 1
        s_add_u32 s62, s62, 52
        s_lshl_b32 s62, s62, 12
        s_add_u32 {sHL13}, s3, s62
        s_lshr_b32 s3, s53, 1
        s_lshl_b32 s3, s3, 7
        s_and_b32 s62, s53, 1
        s_lshl_b32 s62, s62, 3
        s_add_u32 s62, s62, {sCB}
        s_lshl_b32 s62, s62, 2
        s_add_u32 s3, s3, s62
        s_add_u32 {sFXw}, s3, {FX_OFF}
        s_lshr_b32 s3, s52, 1
        s_lshl_b32 s3, s3, 7
        s_add_u32 {sFXp}, s3, {FX_OFF}
        s_lshl_b32 s3, s54, 7
        s_lshl_b32 s62, {sM}, 1
        s_add_u32 s62, s62, s55
        s_lshl_b32 s62, s62, 2
        s_add_u32 s3, s3, s62
        s_add_u32 {sFOw}, s3, {FO_OFF}
        s_add_u32 {sFHw}, s3, {FH_OFF}
        s_lshl_b32 s3, {sRQ}, 7
        s_add_u32 {sFHp}, s3, {FH_OFF}
        s_lshl_b32 s62, {sW}, 5
        s_add_u32 s3, s3, s62
        s_add_u32 {sFOp}, s3, {FO_OFF}
        s_mul_i32 {sKV}, {sM}, 5120
        s_add_u32 {sKV}, {sKV}, {KV_OFF}
        s_mul_i32 s3, {sW}, 1280
        s_add_u32 {sKVw}, {sKV}, s3
        s_mov_b32 s48, 0xaaaaaaaa
        s_mov_b32 s49, 0xaaaaaaaa
        s_mov_b32 s50, 0x33333333
        s_mov_b32 s51, 0x33333333
        s_mov_b32 s76, {EPS6}
        s_mov_b32 s77, {EPS6}
        s_mov_b32 s78, {LOG2E}
        s_mov_b32 s79, {LOG2E}
        s_mov_b32 s80, {NEG_EPS_L2E}
        s_mov_b32 s81, {NEG_EPS_L2E}
        """)
        if self.dual:
            p(f"""
            s_getreg_b32 s90, hwreg(HW_REG_XCC_ID, 0, 4)
            s_add_u32 s90, s90, 1
            s_lshl_b32 s91, {sG}, 7
            s_add_u32 s91, s91, {FXCC_OFF}
            s_lshl_b32 s3, {sM}, 2
            s_add_u32 s3, s3, s91
            v_mov_b32 v44, s90
            s_mov_b64 exec, 1
            """)
            p.vm("buffer_store_dword v44, off, s[4:7], s3 sc1")
            p("s_mov_b64 exec, -1")
    def tables_load(self):
        p = self.p
        p(f"""
        v_lshrrev_b32 v45, 4, v200                ; t
        v_lshlrev_b32 v200, 2, v200               ; col*4
        s_mul_i32 s3, {sM}, 2560
        s_cmp_ge_u32 {sW}, 2
        s_cselect_b32 s62, {CS1_OFF-CSQ_OFF}, 0
        s_add_u32 s3, s3, s62
        s_add_u32 s72, s3, {CSQ_OFF}
        v_lshrrev_b32 v46, 2, v42
        v_lshlrev_b32 v46, 3, v46
        v_and_b32 v47, 3, v42
        v_add_u32 v46, v46, v47
        v_lshrrev_b32 v47, 1, v45
        v_and_b32 v48, 1, v45
        v_lshlrev_b32 v47, 5, v47
        v_lshl_add_u32 v47, v48, 2, v47
        s_mul_i32 s3, {sM}, 96
        s_lshr_b32 s62, {sM}, 1
        s_min_u32 s62, s62, 5
        s_add_u32 s62, s62, 48
        s_lshl_b32 s62, s62, 5
        s_and_b32 s63, {sM}, 1
        s_lshl_b32 s63, s63, 2
        s_add_u32 s62, s62, s63
        v_add_u32 v48, s3, v47
        v_mov_b32 v49, s62
        v_cmp_le_u32 vcc, 6, v45
        v_cndmask_b32 v48, v48, v49, vcc
        v_add_lshl_u32 v201, v48, v46, 1
        s_mul_i32 s3, s57, 3
        s_add_u32 s3, s3, s56
        s_lshl_b32 s3, s3, 5
        s_add_u32 s62, s56, 2
        s_lshl_b32 s62, s62, 5
        s_lshl_b32 s63, s57, 2
        s_add_u32 s62, s62, s63
        v_add_u32 v48, s3, v47
        v_mov_b32 v49, s62
        v_cmp_le_u32 vcc, 4, v45
        v_cndmask_b32 v48, v48, v49, vcc
        v_add_lshl_u32 v202, v48, v46, 1
        s_lshr_b32 s3, {sW}, 1
        s_lshl_b32 s3, s3, 9
        s_add_u32 s3, s3, {TAB}
        v_add_u32 v203, s3, v200
        s_cmp_ge_u32 {sW}, 2
        s_cselect_b32 s3, {T_B1}, 0
        s_cselect_b32 s62, 0, {T_B2}
        s_add_u32 s3, s3, s62
        v_add_u32 v204, s3, v200
        s_cmp_ge_u32 {sW}, 2
        s_cselect_b64 s[62:63], -1, 0
        """)
        items = [p.mkvm(f"buffer_load_dword v{208+k}, v200, s[4:7], s72 offen offset:{k*512}") for k in range(5)]
        items.append(p.mkvm(f"buffer_load_ushort v214, v201, s[12:15], 0 offen"))
        items.append(p.mkvm(f"buffer_load_ushort v215, v202, s[68:71], 0 offen"))
        fin = [p.mk(s) for s in ("v_add_f32 v208, v208, v209", "v_add_f32 v210, v210, v211", "v_add_f32 v208, v208, v212", "v_cndmask_b32 v214, v215, v214, s[62:63]",
                                 "v_add_f32 v208, v208, v210", "v_lshlrev_b32 v214, 16, v214")]
        fin += [p.mkds("ds_write_b32 v203, v208"), p.mkds("ds_write_b32 v204, v214")]
        return items, fin
    def phi_pairs(self, a, n, tt, arg_srcs, lo, dst):
        p = self.p; it = []
        for h in range(0, n, 2): it.append(p.mk(pk("v_pk_fma_f32", tt+h, [("p", a+h)] + arg_srcs)))
        for r in range(n): it.append(p.mk(f"v_exp_f32_e64 v{tt+r}, v{tt+r} clamp"))
        for r in range(n): it.append(p.mk(f"v_max_f32 v{a+r}, {lo}, v{a+r}"))
        for h in range(0, n, 2): it.append(p.mk(pk("v_pk_add_f32", a+h, [("p", a+h), ("p", tt+h)])))
        for h in range(0, n, 2): it.append(p.mk(f"v_cvt_pk_bf16_f32 v{dst[h//2]}, v{a+h}, v{a+h+1}"))
        return it

    def phase_A(self, layer, stages):
        p = self.p; o = self.o
        ACC = lambda t, rt: W + (t*2 + rt)*4
        BB = lambda st, t: q(76 + (st & 1)*20 + t*4)
        AF = lambda ks, rt: q((ks*2 + rt)*4, 4, "a")
        RS1, MRS1, RS, MRS, CS = 116, 124, 132, 134, 136
        T = 144
        first, aex = ramp([self.a_loads(ks) for ks in range(20)], *o["rampA"], 20)
        extra = {k: [] for k in range(20)}
        if layer == 0:
            p.add(first)
            p.add(stages[1].take())
            self.setup2()
            tl, tfin = self.tables_load()
            if o["tlb"]:
                p(f"v_lshlrev_b32 v205, 19, {vL4}\nv_min_u32 v205, {H_OFF+0x600000}, v205\nv_lshlrev_b32 v206, 13, {vL4}")
                extra[1] += [p.mkvm(f"buffer_load_dword v216, v205, s[4:7], 0 offen"), p.mkvm(f"buffer_load_dword v217, v206, s[8:11], 0 offen")]
            extra[2] += [p.mkvm(f"buffer_load_dwordx4 {q(RES)}, {vXW}, s[4:7], 0 offen sc1"), p.mkvm(f"buffer_load_dwordx4 {q(RES+4)}, {vXW}, s[4:7], 0 offen offset:1024 sc1"),
                         p.mkvm(f"buffer_load_dwordx2 {q(RES+8,2)}, {vXWh}, s[4:7], 0 offen sc1")]
            for s in range(2, 5): spread(extra, stages[s].take(), 4*(s-2), 4*(s-2)+3)
            spread(extra, stages[5].take(), 12, 20)
            spread(extra, tl, 3, 6); spread(extra, tfin, 10, 12)
        else:
            p.add(first)
            rest = stages[4].take() + stages[5].take()
            if rest: spread(extra, rest, *o["A1_wq"])
        for ks in range(20): extra[ks] = aex[ks] + extra[ks]
        extra[2] += self.stats_loads(T)
        if o["touch"]:
            extra[3] += [p.mk(f"v_and_b32 v{T+8}, 0x1c, {vL4}"), p.mk(f"v_lshlrev_b32 v{T+8}, 5, v{T+8}"), p.mk(f"v_and_b32 v{T+9}, 0x20, {vL4}"), p.mk(f"v_cmp_ne_u32 vcc, 0, v{T+9}"),
                         p.mk(f"v_sub_u32 v{T+9}, {vOs}, {vL16}"), p.mk(f"v_cndmask_b32 v{T+9}, 0, v{T+9}, vcc"), p.mk(f"v_add_u32 v{T+8}, v{T+8}, v{T+9}"),
                         p.mk(f"v_and_b32 v{T+9}, 0x40, {vL4}"), p.mk(f"v_mul_u32_u24 v{T+9}, 320, v{T+9}"), p.mk(f"v_add_u32 v{T+8}, v{T+8}, v{T+9}")]
            extra[15] += [p.mkvm(f"buffer_load_dword v{T+9}, v{T+8}, s[4:7], {sOW[0]} offen sc1")]
        spread(extra, self.stats_calc(T, RS, MRS), 7, 11)
        st = [p.mk(f"s_lshl_b32 s3, {sW}, 8"), p.mk(f"v_add_u32 v{T+10}, s3, {vTabC}"), p.mk(f"v_add_u32 v{T+11}, s3, {vTab4}")]
        for rt in range(2):
            st.append(p.mkds(f"ds_write_b32 v{T+10}, v{RS+rt} offset:{2048 + rt*64}"))
            st.append(p.mkds(f"ds_write_b32 v{T+10}, v{MRS+rt} offset:{2048 + 128 + rt*64}"))
        extra[12] += st
        for rt in range(2):
            extra[13].append(p.mkds(f"ds_read_b128 {q(RS1+rt*4)}, v{T+11} offset:{2048 + rt*64}"))
            extra[14].append(p.mkds(f"ds_read_b128 {q(MRS1+rt*4)}, v{T+11} offset:{2048 + 128 + rt*64}"))
        spread(extra, [p.mkds(f"ds_read_b32 v{CS+t}, {vTabC} offset:{t*64}") for t in range(5)], 17, 19)
        XE, XL, XB, XM = T+12, T+13, T+14, T+15
        extra[16] += [p.mk(s) for s in (f"v_mov_b32 v{XE}, {EPS6}", f"v_mov_b32 v{XL}, {LOG2E}", f"v_mov_b32 v{T+16}, {NEG_EPS_L2E}", f"v_mov_b32 v{XB}, 0xc47a0000", f"v_mov_b32 v{XM}, 0xff800000")]
        extra[18] += [p.mk(s) for s in (f"v_cndmask_b32 v{XM}, v{XM}, v{XE}, {sLO2}", f"v_cndmask_b32 v{XE}, 0, v{XE}, {sLO2}", f"v_cndmask_b32 v{XL}, 0, v{XL}, {sLO2}", f"v_cndmask_b32 v{XB}, v{XB}, v{T+16}, {sLO2}")]
        extra[19] += [p.mk(f"v_mov_b32 v{T+17}, {NEG_EPS_L2E}"), p.mk(f"v_mov_b32 v{T+16}, 0x3f803f80")]
        def bar(s):
            def f():
                if s in stages: p.wait(*stages[s].toks())
                if s == 4 and layer == 0: p.wait(*self.toks(tfin))
                p("s_barrier")
            return f
        pre = {4*s: bar(s) for s in (range(5) if layer == 0 else (0, 4))}
        def mf(ks): return [mfma(q(ACC(t, rt)), AF(ks, rt), BB(ks, t), "0" if ks == 0 else q(ACC(t, rt))) for t in range(5) for rt in range(2)]
        def dsr(ks):
            r = []
            for t in range(5):
                b, im = ldsaddr(wq_p1_off(ks) + t*1024); r.append(f"ds_read_b128 {BB(ks, t)}, {b} offset:{im}")
            return r
        self.gemm_pass(20, mf, dsr, extra, pre)
        self.stamp(f"A{layer}.p1")
        wo, w1a, w1b = self.s_wo, self.s_w1a, self.s_w1b
        PK = lambda t: 76 + 4*t
        v = []
        for t in (0, 1, 4, 2, 3):
            for rt in range(2):
                a = ACC(t, rt); tt = T + 4*rt
                third = ("s", sEPS2) if t < 2 else ("b", XE)
                for h in (0, 2):
                    if t in (2, 3): v.append(p.mk(pk("v_pk_mul_f32", tt+h, [("p", MRS1+rt*4+h), ("b", CS+t)])))
                    else: v.append(p.mk(pk("v_pk_fma_f32", tt+h, [("p", MRS1+rt*4+h), ("b", CS+t), third])))
                for h in (0, 2): v.append(p.mk(pk("v_pk_fma_f32", a+h, [("p", a+h), ("p", RS1+rt*4+h), ("p", tt+h)])))
                dst = [PK(t)+rt*2, PK(t)+rt*2+1]
                if t < 2: v += self.phi_pairs(a, 4, tt, [("s", sL2E2), ("b", T+17)], "s76", dst)
                elif t == 4: v += self.phi_pairs(a, 4, tt, [("b", XL), ("b", XB)], f"v{XM}", dst)
                else: v += [p.mk(f"v_cvt_pk_bf16_f32 v{dst[0]}, v{a}, v{a+1}"), p.mk(f"v_cvt_pk_bf16_f32 v{dst[1]}, v{a+2}, v{a+3}")]
            if t == 4:
                v += [p.mk(f"v_cndmask_b32 v{96+k}, v{PK(4)+k}, v{T+16}, {sLO2}") for k in range(4)]
                K0, K1, V0, V1, X, XP = (q(PK(0)), q(PK(1)), q(PK(2)), q(PK(3)), q(PK(4)), q(96))
                v += [p.mk(mfma(q(100), K0, XP, "0")), p.mk(mfma(q(104), K1, XP, "0")), p.mk(mfma(q(108), X, XP, "0"))]
            if t == 2: v += [p.mk(mfma(q(36), K0, V0, "0")), p.mk(mfma(q(40), X, V0, "0"))]
        G = 148
        v += [p.mk(mfma(q(44), K1, V1, "0")), p.mk(mfma(q(48), X, V1, "0"))]
        v += [p.mk(s) for s in (f"v_cndmask_b32 v{G+13}, v100, v104, {sODD}", f"v_cndmask_b32 v{G+14}, v101, v105, {sODD}", f"v_cndmask_b32 v{G+16}, v102, v106, {sODD}",
                                f"v_cndmask_b32 v{G+17}, v103, v107, {sODD}", f"v_cndmask_b32 v{G+18}, v108, v109, {sODD}", f"v_mov_b32 v{G+19}, 0x3e800000")]
        self.weave(v, wo.take(o["a2_wo"])); assert wo.left() >= 1
        wt = [p.ds(f"ds_write_b128 {vKVw}, {q(G+16)} offset:4096")]
        p(f"v_mov_b32 v{G+3}, 0x3e800000\nv_mov_b32 v{G+7}, 0x3e800000\nv_mov_b32 v{G+11}, 0x3e800000\nv_mov_b32 v{G+15}, 0x3e800000")
        p(f"v_mov_b32 v{G}, v36\nv_mov_b32 v{G+1}, v37\nv_mov_b32 v{G+2}, v38")
        wt.append(p.ds(f"ds_write_b128 {vKVw}, {q(G)}"))
        p(f"v_mov_b32 v{G+4}, v39\nv_mov_b32 v{G+5}, v40\nv_mov_b32 v{G+6}, v44")
        wt.append(p.ds(f"ds_write_b128 {vKVw}, {q(G+4)} offset:1024"))
        p(f"v_mov_b32 v{G+8}, v45\nv_mov_b32 v{G+9}, v46\nv_mov_b32 v{G+10}, v47")
        wt.append(p.ds(f"ds_write_b128 {vKVw}, {q(G+8)} offset:2048"))
        p(f"v_mov_b32 v{G+12}, v49")
        wt.append(p.ds(f"ds_write_b128 {vKVw}, {q(G+12)} offset:3072"))
        p.wait(*wt); p.wait(*stages[5].toks())
        p("s_barrier")
        RD = 100
        for i in range(5):
            for s in range(4): p.ds(f"ds_read_b32 v{RD+i*4+s}, {vKVr} offset:{s*5120 + i*256}")
        for i in range(5):
            b = RD + i*4
            p(pk("v_pk_add_f32", b, [("p", b), ("p", b+2)])); p(f"v_add_f32 v{b}, v{b}, v{b+1}")
            p.vm(f"buffer_atomic_add_f32 v{b}, {vL4}, s[4:7], {sKVw} offen offset:{i*256}")
        self.stamp(f"A{layer}.atom")
        ACC2 = lambda t, rt: W + (t*2 + rt)*4
        BB2 = lambda st, t: q(76 + (st & 1)*12 + t*4)
        def dsr2(ks): return [f"ds_read_b128 {BB2(ks, t)}, {vQX if t == 2 else vL16} offset:{ks*2560 + t*1024}" for t in range(3)]
        extra = {k: [] for k in range(20)}
        if wo.left(): spread(extra, wo.take(), *o["A2_wo"])
        n1 = w1a.left() + w1b.left() - o["a4_w1"] - o["a5_w1"] - min(o["B_w1"], 0)
        its = w1a.take(n1); its += w1b.take(n1 - len(its))
        if its: spread(extra, its, *o["A2_w1"])
        CS2 = 120
        spread(extra, [p.mkds(f"ds_read_b128 {q(CS2+4*t)}, {vTab4} offset:{(5+t)*64}") for t in range(3)], 16, 19)
        extra[19] += [p.mk(f"v_mov_b32 v{k}, 0") for k in (103, 107, 111, 115, 65, 71)]
        pre = {5: lambda: p("s_barrier")}
        first_b = next((k for k in range(20) if any(x in w1b.items for x in extra[k])), 99); assert first_b >= 5
        def mf2(ks): return [mfma(q(ACC2(t, rt)), BB2(ks, t), AF(ks, rt), "0" if ks == 0 else q(ACC2(t, rt))) for t in range(3) for rt in range(2)]
        self.gemm_pass(20, mf2, dsr2, extra, pre)
        p("s_barrier")
        self.stamp(f"A{layer}.p2")
        KVR = 144
        def kvloads():
            for k in range(5): p.vm(f"buffer_load_dwordx4 {q(KVR+4*k)}, {vL16 if k < 4 else vL16k}, s[4:7], {sKV} offen offset:{(k&3)*1024} sc1")
            if xchk: p.vm(f"buffer_load_dword {vP}, {vT0}, s[4:7], s91 offen sc1")
        xchk = self.dual and layer == 0
        if xchk: p(f"v_and_b32 {vT0}, 63, {vL4}")
        its = w1a.take(o["a4_w1"]); its += w1b.take(o["a4_w1"] - len(its)); p.add(its)
        kvloads()
        p(f"v_mov_b32 v{T-1}, {NEG_EPS_L2E}")
        v = []
        for rt in range(2):
            D = 60 + rt*6
            for t in range(3):
                a = ACC2(t, rt); n = 4 if t < 2 else 2; tt = 136 + 4*(t & 1)
                if tt + n > T-1: tt = 136
                for h in range(0, n, 2): v.append(p.mk(pk("v_pk_fma_f32", tt+h, [("p", CS2+4*t+h), ("b", MRS+rt), ("s", sEPS2)])))
                for h in range(0, n, 2): v.append(p.mk(pk("v_pk_fma_f32", a+h, [("p", a+h), ("b", RS+rt), ("p", tt+h)])))
                v += self.phi_pairs(a, n, tt, [("s", sL2E2), ("b", T-1)], "s76", [[D, D+1], [D+3, D+4], [D+2]][t])
        p.add(v)
        self.stamp(f"A{layer}.phi")
        L = p.newlabel("L_kv"); L2 = p.newlabel("L_kvok")
        def check(br):
            p.waitall(lgkm=False)
            p(f"v_min_f32 v136, v{KVR+3}, v{KVR+7}\nv_min3_f32 v136, v136, v{KVR+11}, v{KVR+15}\nv_min_f32 v136, v136, v{KVR+19}\nv_cmp_gt_f32 vcc, {sT[0]}, v136")
            if xchk: p(f"v_cmp_eq_u32 s[92:93], 0, {vP}\ns_or_b64 vcc, vcc, s[92:93]")
            p(br)
        p(f"s_mov_b32 {sSpin}, 0\ns_mov_b32 {sT[0]}, 0x41800000")
        check(f"s_cbranch_vccz {L2}")
        p.label(L)
        p("s_sleep 4")
        kvloads()
        p(f"s_add_u32 {sSpin}, {sSpin}, 1\ns_cmp_gt_u32 {sSpin}, 0x40000\ns_cbranch_scc1 L_abort")
        check(f"s_cbranch_vccnz {L}")
        p.label(L2)
        if xchk:
            p(f"v_cmp_ne_u32 vcc, s90, {vP}\ns_cbranch_vccnz L_slow")
            p.raw(";SPLIT")
        self.stamp(f"A{layer}.kv")
        a_ = [KVR+k for k in (0, 1, 2, 4, 5)]; b_ = [KVR+k for k in (6, 8, 9, 10, 12)]; y_ = [KVR+k for k in (13, 14, 16, 17, 18)]
        p(f"""
        v_cvt_pk_bf16_f32 v116, v{y_[0]}, v{y_[1]}
        v_cvt_pk_bf16_f32 v117, v{y_[2]}, v{y_[3]}
        v_cvt_pk_bf16_f32 v118, v{y_[4]}, 0
        v_cvt_pk_bf16_f32 v119, 0, v{y_[4]}
        v_cndmask_b32 v108, v116, 0, {sODD}
        v_cndmask_b32 v109, v117, 0, {sODD}
        v_cndmask_b32 v110, v118, 0, {sODD}
        v_cndmask_b32 v112, 0, v119, {sODD}
        v_cndmask_b32 v113, 0, v116, {sODD}
        v_cndmask_b32 v114, 0, v117, {sODD}
        v_cvt_pk_bf16_f32 v100, v{a_[0]}, v{a_[1]}
        """)
        N = lambda rt: 76 + rt*12
        p(mfma(q(N(0)+8), q(108), q(60), "0"))
        p(f"v_cvt_pk_bf16_f32 v101, v{a_[2]}, v{a_[3]}\nv_cvt_pk_bf16_f32 v102, v{a_[4]}, 0")
        p(mfma(q(N(1)+8), q(108), q(66), "0"))
        p(f"v_cvt_pk_bf16_f32 v104, 0, v{b_[4]}\nv_cvt_pk_bf16_f32 v105, v{b_[0]}, v{b_[1]}")
        p(mfma(q(N(0)+8), q(112), q(62), q(N(0)+8)))
        p(f"v_cvt_pk_bf16_f32 v106, v{b_[2]}, v{b_[3]}")
        p(mfma(q(N(1)+8), q(112), q(68), q(N(1)+8)))
        p(mfma(q(N(0)), q(100), q(60), "0")); p(mfma(q(N(0)+4), q(104), q(62), "0"))
        p(mfma(q(N(1)), q(100), q(66), "0")); p(mfma(q(N(1)+4), q(104), q(68), "0"))
        for rt in range(2):
            b = N(rt)
            p(pk("v_pk_add_f32", b+8, [("p", b+8), ("s", sEPS2)]))
            p(f"v_rcp_f32 v{b+8}, v{b+8}\nv_rcp_f32 v{b+9}, v{b+9}")
        st = []
        for rt in range(2):
            b = N(rt); P = 120 + rt*6
            p(pk("v_pk_mul_f32", b+10, [("p", b+10), ("p", b+8)]))
            for h in (0, 2): p(pk("v_pk_mul_f32", b+h, [("p", b+h), ("b", b+8)]))
            for h in (4, 6): p(pk("v_pk_mul_f32", b+h, [("p", b+h), ("b", b+9)]))
            p(f"v_cvt_pk_bf16_f32 v{P+4}, v{b+10}, v{b+11}")
            for k in range(4): p(f"v_cvt_pk_bf16_f32 v{P+k}, v{b+2*k}, v{b+2*k+1}")
            st.append(p.vm(f"buffer_store_dwordx4 {q(P)}, {vL16}, s[4:7], {sOW[rt]} offen {self.pol}"))
            st.append(p.vm(f"buffer_store_dword v{P+4}, {vOs}, s[4:7], {sOW[rt]} offen {self.pol}"))
        p(f"s_add_u32 {sKV}, {sKV}, {KV_LAYER}\ns_add_u32 {sKVw}, {sKVw}, {KV_LAYER}")
        self.signal(sFOw, layer+1, st)
        self.stamp(f"A{layer}.sig")
        its = w1a.take(o["a5_w1"]); its += w1b.take(o["a5_w1"] - len(its)); p.add(its)
        p.add(self.s_w2v.take(o["a5_w2v"]))

    OWN = staticmethod(lambda t: W + (15 + t)*4)
    def own_init(self, bias):
        p = self.p
        if bias:
            for t in range(5): p.ds(f"ds_read_b128 {q(120+4*t)}, {vTab4} offset:{T_B2-TAB + t*64}")
        for t in range(5):
            a = self.OWN(t); r0 = RES + 2*t
            p(f"v_lshlrev_b32 v{a}, 16, v{r0}\nv_and_b32 v{a+1}, 0xffff0000, v{r0}\nv_lshlrev_b32 v{a+2}, 16, v{r0+1}\nv_and_b32 v{a+3}, 0xffff0000, v{r0+1}")
        if bias:
            for t in range(5):
                a = self.OWN(t)
                for h in (0, 2): p(pk("v_pk_add_f32", a+h, [("p", a+h), ("p", 120+4*t+h)]))
    def scr_writes(self, i):
        return [self.p.mkds(f"ds_write_b128 v{SCRA+i}, {q(W + (i*5+t)*4)} offset:{t*1024}") for t in range(5)]
    def reduce_epilogue(self, wtoks, final, flagval, name, mid_bg=()):
        p = self.p
        if final:
            p(f"v_lshrrev_b32 v144, 6, {vL4}\nv_lshlrev_b32 v144, 4, v144\nv_and_b32 v145, 60, {vL4}\nv_mul_u32_u24 v145, 320, v145\nv_add_u32 v144, v144, v145")
            p(f"s_and_b32 s3, {sCB}, 1\ns_mul_i32 s3, s3, {-64-128+8 & 0xffffffff}\ns_add_u32 s3, s3, 128\ns_add_u32 {sT[1]}, s3, {sOUT}")
        else:
            p(f"v_mov_b32 v140, 0\nv_mov_b32 v141, 0\nv_mov_b32 v142, 0\nv_mov_b32 v143, 0\nv_mov_b32 v144, 0x3f803f80")
        p.wait(*wtoks)
        p("s_barrier")
        for t in range(5):
            for i in range(3): p.ds(f"ds_read_b128 {q(W + (i*5+t)*4)}, v{SCRA+3} offset:{i*5120 + t*1024}")
        p.add(list(mid_bg))
        st = []
        for t in range(5):
            a = self.OWN(t)
            x0, x1, x2 = (W + (i*5+t)*4 for i in range(3))
            for h in (0, 2): p(pk("v_pk_add_f32", a+h, [("p", a+h), ("p", x0+h)]))
            for h in (0, 2): p(pk("v_pk_add_f32", x1+h, [("p", x1+h), ("p", x2+h)]))
            for h in (0, 2): p(pk("v_pk_add_f32", a+h, [("p", a+h), ("p", x1+h)]))
            p(f"v_cvt_pk_bf16_f32 v{RES+2*t}, v{a}, v{a+1}\nv_cvt_pk_bf16_f32 v{RES+2*t+1}, v{a+2}, v{a+3}")
            if t in (1, 3, 4):
                if final:
                    if t < 4: p.vm(f"buffer_store_dwordx4 {q(RES+2*t-2)}, v144, s[8:11], {sOUT} offen offset:{(t>>1)*64}")
                    else: p.vm(f"buffer_store_dwordx2 {q(RES+8,2)}, v144, s[8:11], {sT[1]} offen")
                else:
                    if t < 4: st.append(p.vm(f"buffer_store_dwordx4 {q(RES+2*t-2)}, {vXW}, s[4:7], 0 offen offset:{(t>>1)*1024} {self.pol}"))
                    else: st.append(p.vm(f"buffer_store_dwordx2 {q(RES+8,2)}, {vXWh}, s[4:7], 0 offen {self.pol}"))
            if not final:
                for k in range(2):
                    p(f"v_dot2_f32_bf16 v{140+2*k}, v{RES+2*t+k}, v144, v{140+2*k}\nv_dot2_f32_bf16 v{141+2*k}, v{RES+2*t+k}, v{RES+2*t+k}, v{141+2*k}")
        if final: return
        p(pk("v_pk_add_f32", 140, [("p", 140), ("p", 142)]))
        p(f"""
        v_permlane32_swap_b32 v140, v141
        v_add_f32 v140, v140, v141
        v_mov_b32 v141, v140
        v_permlane16_swap_b32 v140, v141
        v_add_f32 v140, v140, v141
        """)
        st.append(p.vm(f"buffer_store_dword v140, {vSTw}, s[4:7], 0 offen {self.pol}"))
        self.signal(sFXw, flagval, st)
        self.stamp(name + ".sig")
        p("s_barrier")

    def phase_B(self, layer):
        p = self.p; o = self.o
        self.own_init(False)
        self.poll(sFOp, 7, layer+1, f"B{layer}.poll")
        OF = lambda i, k: q((i*5 + k)*4, 4, "a")
        WF = lambda k, t: q(160 + (k*5+t)*4, 4, "a") if k*5+t < 24 else q(164)
        loads = lambda i: [self.lda(f"buffer_load_dwordx4 {OF(i,u)}, {vL16 if u < 4 else vL16k}, s[4:7], {sOL[i]} offen offset:{(u&3)*1024} sc1") for u in range(5)]
        p.add(loads(0)); p.add(loads(1))
        bg = self.s_w1a.take() + self.s_w1b.take() + self.s_w2v.take(o["B_w2v"])
        wt = []
        for i in range(4):
            acc = lambda t: q(W + (i*5+t)*4)
            main = [[p.mk(mfma(acc(t), WF(k, t), OF(i, k), "0" if (k == 0 and i < 3) else acc(t)))] for k in range(5) for t in range(5)]
            if i + 2 < 4: main = interleave(main, loads(i+2), start=0, per=1, every=4)
            elif bg:
                h = -(-len(bg)//2); part = bg[:h] if i == 2 else bg[h:]
                if part: main = interleave(main, part, start=1, per=1, every=max(1, 24//len(part)))
            if i > 0:
                w = self.scr_writes(i-1); wt += self.toks(w)
                main = interleave(main, w, start=6, per=1, every=4)
            p.add(main)
        self.stamp(f"B{layer}.mm")
        self.s_w2a = Stream(self.regload(sW2, 22*1024, [q(160+4*k, 4, "a") for k in range(24)], 1))
        self.s_w1p2 = Stream(self.dma(sW1, 81920, W1P2, 15360, 0))
        self.reduce_epilogue(wt, False, 2*layer+1, f"B{layer}", mid_bg=self.s_w2a.take(o["b2mid_w2a"]))
        p.add(self.s_w1p2.take(o["b2_w1p2"]))
        p.add(self.s_w2v.take(o["b2_w2v"]))

    def phase_C(self, layer):
        p = self.p; o = self.o
        first, aex = ramp([self.a_loads(ks) for ks in range(20)], *o["rampC"], 20)
        self.poll(sFXp, 15, 2*layer+1, f"C{layer}.poll")
        ACC = lambda t, rt: W + (t*2 + rt)*4
        BB = lambda st, t: q(92 + (st & 1)*16 + t*4)
        AF = lambda ks, rt: q((ks*2 + rt)*4, 4, "a")
        RS, MRS, T = 124, 126, 128
        extra = {k: [] for k in range(20)}
        p.add(first)
        if self.s_w1p2.left(): spread(extra, self.s_w1p2.take(), *o["C1_w1p2"])
        if o["C1_w2a"]: spread(extra, self.s_w2a.take(o["C1_w2a"][2]), *o["C1_w2a"][:2])
        for ks in range(20): extra[ks] = aex[ks] + extra[ks]
        extra[2] += self.stats_loads(T)
        if o["touch"]:
            extra[2] += [p.mk(f"v_and_b32 v{T+8}, 0x3c, {vL4}"), p.mk(f"v_lshlrev_b32 v{T+8}, 5, v{T+8}"), p.mk(f"v_and_b32 v{T+9}, 0xc0, {vL4}"), p.mk(f"v_lshl_add_u32 v{T+9}, v{T+9}, 6, v{T+8}"),
                         p.mk(f"s_min_u32 s3, {sHS}, {H_OFF + 32*221184 - 2048}"), p.mk(f"s_sub_u32 s3, s3, {sHW}"), p.mk(f"v_add_u32 v{T+8}, s3, v{T+8}"),
                         p.mk(f"v_cmp_lt_u32 vcc, 0xbf, {vL4}"), p.mk(f"v_cndmask_b32 v{T+8}, v{T+9}, v{T+8}, vcc")]
            extra[o.get("touchH", 15)] += [p.mkvm(f"buffer_load_dword v{T+9}, v{T+8}, s[4:7], {sHW} offen sc1")]
        spread(extra, self.stats_calc(T, RS, MRS), 7, 11)
        CB = lambda t: T + 8*(t & 1)
        tabrd = lambda t: [p.mkds(f"ds_read_b128 {q(CB(t))}, {vTab4} offset:{T_CS1-TAB + t*64}"), p.mkds(f"ds_read_b128 {q(CB(t)+4)}, {vTab4} offset:{T_B1-TAB + t*64}")]
        extra[19] += tabrd(0)
        pre = {0: lambda: (p.wait(*(self.s_w1a.toks() + self.s_w1b.toks())), p("s_barrier"))}
        def mf(ks): return [mfma(q(ACC(t, rt)), BB(ks, t), AF(ks, rt), "0" if ks == 0 else q(ACC(t, rt))) for t in range(4) for rt in range(2)]
        def dsr(ks):
            r = []
            for t in range(4):
                b, im = ldsaddr(W1P1 + ks*4096 + t*1024); r.append(f"ds_read_b128 {BB(ks, t)}, {b} offset:{im}")
            return r
        self.gemm_pass(20, mf, dsr, extra, pre)
        self.stamp(f"C{layer}.p1")
        TT = T + 16; DST = T + 24
        def epi(t, rt, dst, packed):
            a = ACC(t, rt); tt = TT + 4*rt; c = CB(t)
            if packed:
                it = [p.mk(pk("v_pk_fma_f32", tt+h, [("p", c+h), ("b", MRS+rt), ("p", c+4+h)])) for h in (0, 2)]
                it += [p.mk(pk("v_pk_fma_f32", a+h, [("p", a+h), ("b", RS+rt), ("p", tt+h)])) for h in (0, 2)]
                it += [p.mk(f"v_max_f32 v{a+r}, 0, v{a+r}") for r in range(4)]
                it += [p.mk(pk("v_pk_mul_f32", a+h, [("p", a+h), ("p", a+h)])) for h in (0, 2)]
            else:
                it = [p.mk(f"v_fma_f32 v{tt+r}, v{c+r}, v{MRS+rt}, v{c+4+r}") for r in range(4)]
                it += [p.mk(f"v_fma_f32 v{a+r}, v{a+r}, v{RS+rt}, v{tt+r}") for r in range(4)]
                it += [p.mk(f"v_max_f32 v{a+r}, 0, v{a+r}") for r in range(4)]
                it += [p.mk(f"v_mul_f32 v{a+r}, v{a+r}, v{a+r}") for r in range(4)]
            it += [p.mk(f"v_cvt_pk_bf16_f32 v{dst}, v{a}, v{a+1}"), p.mk(f"v_cvt_pk_bf16_f32 v{dst+1}, v{a+2}, v{a+3}")]
            return it
        st = []; pkin = o.get("pk_inloop", 0)
        e1 = [p.mk(f"s_add_u32 {sT[1]}, {sHW}, 4096"), p.mk(f"s_add_u32 {sT[2]}, {sHW}, 8192")]
        for t in range(4):
            e1 += tabrd(t+1)
            for rt in range(2):
                d = DST + ((t >> 1)*2 + rt)*4
                e1 += epi(t, rt, d + 2*(t & 1), pkin)
                if t & 1:
                    s = p.mkvm(f"buffer_store_dwordx4 {q(d)}, {vL16}, s[4:7], {[sHW, sT[1]][t>>1]} offen offset:{rt*1024} {self.pol}")
                    e1.append(s); st.append(s.tok)
        e1 += tabrd(5)
        extra = {k: [] for k in range(20)}
        spread(extra, e1, 1, 20)
        if self.s_w2a.left() and o["C2_w2a"]: spread(extra, self.s_w2a.take(), *o["C2_w2a"])
        self.s_wq = {s: Stream(self.dma(sWQ, wq_p1_off(4*s), wq_p1_off(4*s), 5120, 0)) for s in (4,)}
        self.s_wq[0] = Stream(self.dma(sWQ, wq_p1_off(0), wq_p1_off(0), 20480, 0) if layer == 0 else [])
        self.s_wq[5] = Stream(self.dma(sWQ, 0, 0, 12800, 2))
        if o["C2_wq"]: spread(extra, self.s_wq[0].take(o["C2_wq"][2]), *o["C2_wq"][:2])
        BB2 = lambda s_, t: q(92 + (s_ & 1)*12 + t*4)
        def dsr2(ks): return [f"ds_read_b128 {BB2(ks, t)}, {vL16} offset:{W1P2 + ks*3072 + t*1024}" for t in range(3)]
        def mf2(ks): return [mfma(q(ACC(4+t, rt)), BB2(ks, t), AF(ks, rt), "0" if ks == 0 else q(ACC(4+t, rt))) for t in range(3) for rt in range(2)]
        pre = {0: lambda: (p.wait(*self.s_w1p2.toks()), p("s_barrier"))}
        self.gemm_pass(20, mf2, dsr2, extra, pre)
        self.stamp(f"C{layer}.p2")
        p.add(epi(4, 0, DST, 1) + epi(4, 1, DST+4, 1))
        p.add(tabrd(6))
        for rt in range(2):
            p.add(epi(5, rt, DST+4*rt+2, 1))
            st.append(p.vm(f"buffer_store_dwordx4 {q(DST+4*rt)}, {vL16}, s[4:7], {sT[2]} offen offset:{rt*1024} {self.pol}"))
        for rt in range(2):
            p.add(epi(6, rt, DST+8+2*rt, 1))
            st.append(p.vm(f"buffer_store_dwordx2 {q(DST+8+2*rt,2)}, {vHs}, s[4:7], {sHS} offen offset:{rt*1024} {self.pol}"))
        self.signal(sFHw, layer+1, st)
        self.stamp(f"C{layer}.sig")
        p("s_barrier")

    def phase_D(self, layer):
        p = self.p; o = self.o
        final = layer == 1
        def breg(f):
            if f < 22: return q(W2V + 4*f)
            if f < 46: return q(160 + 4*(f-22), 4, "a")
            if f < 66: return q(80 + 4*(f-46), 4, "a")
            return q(148 + 4*(f-66))
        w2l = Stream(self.regload(sW2, 46*1024, [breg(f) for f in range(46, 70)], 3))
        p.add(self.s_w2a.take()); p.add(self.s_w2v.take())
        p.add(w2l.take(o["c3_w2l"])); p.add(self.s_wq[0].take(o["c3_wq"]))
        HA = 144
        for i in range(4):
            p(f"s_add_u32 s3, {sW}, {1+i}\ns_and_b32 s3, s3, 3\ns_lshl_b32 s3, s3, 10\nv_add_u32 v{HA+i}, s3, {vL16}")
        self.own_init(True)
        self.poll(sFHp, 31, layer+1, f"D{layer}.poll")
        DEPTH = 5; assert o["rampD"][2] < DEPTH
        AF = lambda st, i: q(((st % DEPTH)*4 + i)*4, 4, "a")
        slots = lambda st: (0, 2) if st == 13 else (0, 1, 2, 3)
        def aloads(st):
            r = []
            if st < 12: so = sT[1]; r.append(p.mk(f"s_add_u32 {so}, {sHL}, {st*4096}"))
            else: so = sHL12 if st == 12 else sHL13
            ld = [self.lda(f"buffer_load_dwordx4 {AF(st,i)}, v{HA+i}, s[4:7], {so} offen sc1") for i in slots(st)]
            return [r + [ld[0]]] + ld[1:]
        extra = {k: [] for k in range(14)}
        first, aex = ramp([aloads(st) for st in range(14)], *o["rampD"], 14)
        p.add(first)
        if w2l.left(): spread(extra, w2l.take(), *o["D_w2l"])
        if self.s_wq[0].left(): spread(extra, self.s_wq[0].take(), *o["D_wq"])
        for st in range(14): extra[st] = aex[st] + extra[st]
        ACC = lambda i, t: q(W + (i*5+t)*4)
        NT = 11
        for k in range(NT, 14): assert not extra[k]
        def mf(st): return [mfma(ACC(i, t), breg(st*5+t), AF(st, i), "0" if (st == 0 and i < 3) else ACC(i, t)) for i in slots(st) for t in range(5)]
        self.gemm_pass(NT, mf, lambda st: [], extra)
        wt = []
        for i in range(4):
            main = [[p.mk(mfma(ACC(i, t), breg(st*5+t), AF(st, i), ACC(i, t)))] for st in range(NT, 14) if i in slots(st) for t in range(5)]
            if i > 0:
                w = self.scr_writes(i-1); wt += self.toks(w)
                main = interleave(main, w, start=4, per=1, every=1)
            p.add(main)
        self.stamp(f"D{layer}.mm")
        self.reduce_epilogue(wt, final, 2, f"D{layer}")

    def new_layer_streams(self, layer):
        self.s_wo = Stream(self.regload(sWO, 0, [q(160+4*k, 4, "a") for k in range(24)] + [q(164)], 1))
        self.s_w1a = Stream(self.dma(sW1, 20480, W1P1 + 20480, 15360, 0))
        self.s_w1b = Stream(self.dma(sW1, 0, W1P1, 5120, 2))
        self.s_w2v = Stream(self.regload(sW2, 0, [q(W2V+4*k) for k in range(22)], 3) if layer == 0 else [])

    def finish(self):
        p = self.p
        if self.stamps:
            p(f"s_memtime s[{STAMP0}:{STAMP0+1}]"); p.waitall()
            p(f"v_writelane_b32 {vST}, s{STAMP0}, 63")
            p("s_memrealtime s[64:65]"); p.waitall(vm=False); p(f"v_writelane_b32 {vST}, s64, 62")
            p(f"s_lshl_b32 s3, s2, 2\ns_add_u32 s3, s3, {sW}\ns_lshl_b32 s3, s3, 8\ns_add_u32 s3, s3, {STAMP_OFF}")
            p.vm(f"buffer_store_dword {vST}, {vL4}, s[4:7], s3 offen")
        p("s_endpgm")
        p.raw(";END")
        p.forget()
        p.label("L_abort")
        p("s_load_dwordx2 s[52:53], s[0:1], 72\nv_mov_b32 v40, 0\nv_mov_b32 v41, 1\ns_waitcnt lgkmcnt(0)")
        p.vm("global_atomic_add v40, v41, s[52:53]")
        p.waitall()
        p.label("L_exit")
        p("s_endpgm")

    def build(self):
        p = self.p; o = self.o
        if self.stamps: p("s_memrealtime s[66:67]\ns_memtime s[74:75]")
        self.setup()
        stages = {s: Stream(self.dma(sWQ, wq_p1_off(4*s), wq_p1_off(4*s), 5120, 0)) for s in range(5)}
        stages[5] = Stream(self.dma(sWQ, 0, 0, 12800, 0))
        p.add(stages[0].take())
        if self.stamps:
            p(f"v_mov_b32 {vST}, 0\nv_writelane_b32 {vST}, s66, 61\nv_writelane_b32 {vST}, s74, 0"); self.nst = 1; self.stamp_names.append("start")
        for layer in range(2):
            self.new_layer_streams(layer)
            for ph in "ABCD":
                if ph == "A":
                    if layer == 1:
                        stages = self.s_wq
                        n = o["d2_wq"]; its = stages[4].take(n); its += stages[5].take(n - len(its)); p.add(its)
                        p.add(self.s_wo.take(o["d2_wo"]))
                        self.poll(sFXp, 15, 2, "A1.poll")
                    self.phase_A(layer, stages)
                elif ph == "B": self.phase_B(layer)
                elif ph == "C": self.phase_C(layer)
                else: self.phase_D(layer)
                if self.stop_after == f"{ph}{layer}": break
            else: continue
            break
        self.finish()
        cur = None; out = []
        for it in p.items:
            if it.kind == "m0set":
                src = it.text.split()[-1]
                if cur == src: continue
                cur = src; it = I(it.text)
            elif it.kind == "label": cur = None
            elif it.kind == "i" and cur and re.match(rf"s_\w+ {cur},", it.text): cur = None
            out.append(it)
        p.items = out
        return p.text()

def make(fn, prep_kw=None, **kw):
    from asmgen import multi_file
    from gen_prep import gen_prep, PREP_GRID, PREP_LDS
    dual = kw.pop("dual", False)
    if dual:
        m = Main(pol="", dual="fast", **kw); body = m.build()
        slow = Main(pol="sc1", dual="slow", **kw).build()
        body += "L_slow:\n" + slow.split(";SPLIT\n")[1].split(";END\n")[0]
    else:
        m = Main(**kw); body = m.build()
    pk_ = dict(stamps=m.stamps, code_bytes=1); pk_.update(prep_kw or {})
    txt = multi_file([("prep_kernel", gen_prep(**pk_), 96, 80, 96), ("main_kernel", body, 512, 96, 256)],
                     [("prep_kernel", PREP_GRID, 256, PREP_LDS), ("main_kernel", 256, 256, LDS_BYTES)])
    open(fn, "w").write(txt)
    open(fn + ".stamps", "w").write("\n".join(m.stamp_names))
    print(fn, len(txt), "bytes", "nop states", m.p.nop_states)

if __name__ == "__main__":
    make("k2_a.s", dual=True, stamps=False, opts=dict(tlb=0))
    make("k2_b.s", dual=True, stamps=False, opts=dict(tlb=0), prep_kw=dict(touch=False))
    make("k2_c.s", dual=True, stamps=False, opts=dict(tlb=0), prep_kw=dict(pol=""))
    make("k2_d.s", dual=True, stamps=False, opts=dict(tlb=0), prep_kw=dict(code_bytes=0))
    make("k2_e.s", dual=True, stamps=False, opts=dict(tlb=0, touch=0), prep_kw=dict(touch=False))
```
